```python
import torch

def _softmax(x, axis=-1):
    return torch.softmax(x, dim=axis)

def _gelu(x):
    return torch.nn.functional.gelu(x, approximate='tanh')

def _silu(x):
    return torch.nn.functional.silu(x)

def _sigmoid(x):
    return torch.sigmoid(x)

def _layernorm(x, axis=-1, eps=1e-05):
    m = x.mean(dim=axis, keepdim=True)
    v = x.var(dim=axis, keepdim=True, unbiased=False)
    return (x - m) / torch.sqrt(v + eps)

def _scatter_add(tgt, idx, src, axis=0):
    return tgt.clone().index_add_(axis, idx, src)

def _segment_sum(src, seg, n):
    out = torch.zeros((n,) + src.shape[1:], dtype=src.dtype)
    return out.index_add_(0, seg, src)

def _pad(x, pw):
    flat = tuple((v for pair in reversed(pw) for v in pair))
    return torch.nn.functional.pad(x, flat)
kernel_name = 'parallel_sum__sliding_local_dilated__mixer_gmlp__prompt'

def setup_inputs():

    _w = lambda a: (lambda t: t.to(torch.bfloat16) if t.is_floating_point() else t)(torch.as_tensor(a))

    def _A_setup():
        B, S, D = (1, 2048, 512)
        return {'x': _w((lambda *s: torch.randn(*s, dtype=torch.bfloat16) * 0.05)(B, S, D)), 'wqkv': _w((lambda *s: torch.randn(*s, dtype=torch.bfloat16) * 0.1)(D, 3 * D)), 'wo': _w((lambda *s: torch.randn(*s, dtype=torch.bfloat16) * 0.05)(D, D))}
    _A_in = _A_setup()

    def _B_setup():
        B, S, D, F = (1, 2048, 512, 1792)
        Fh = F // 2
        return {'x': _w((lambda *s: torch.randn(*s, dtype=torch.bfloat16) * 0.05)(B, S, D)), 'w_in': _w((lambda *s: torch.randn(*s, dtype=torch.bfloat16) * 0.4)(D, 2 * Fh)), 'w_sp': _w(0.01 * (lambda *s: torch.randn(*s, dtype=torch.bfloat16) * 0.4)(S, S)), 'b_sp': _w(1.0 + 0.01 * (lambda *s: torch.randn(*s, dtype=torch.bfloat16) * 0.05)(S)), 'w_out': _w((lambda *s: torch.randn(*s, dtype=torch.bfloat16) * 0.05)(Fh, D))}
    _B_in = _B_setup()
    return {'A_x': _A_in['x'], 'A_wqkv': _A_in['wqkv'], 'A_wo': _A_in['wo'], 'B_x': _B_in['x'], 'B_w_in': _B_in['w_in'], 'B_w_sp': _B_in['w_sp'], 'B_b_sp': _B_in['b_sp'], 'B_w_out': _B_in['w_out']}

def reference(A_x, A_wqkv, A_wo, B_x, B_w_in, B_w_sp, B_b_sp, B_w_out):

    def _A_ref(x, wqkv, wo):
        B, S, D = x.shape
        H = 32
        Dh = D // H
        W, dil = (8, 2)
        qkv = (lambda x, *d: x.permute(*d))((x @ wqkv).reshape(B, S, 3, H, Dh), 2, 0, 3, 1, 4)
        q, k, v = (qkv[0], qkv[1], qkv[2])
        scale = Dh ** (-0.5)
        pos = torch.arange(S)
        off = torch.arange(W) * dil
        idx = pos[:, None] - off[None, :]
        mask = idx >= 0
        idx_c = torch.where(mask, idx, 0).reshape(-1)
        kg = k[:, :, idx_c, :].reshape(B, H, S, W, Dh)
        vg = v[:, :, idx_c, :].reshape(B, H, S, W, Dh)
        logits = torch.einsum('bhsd,bhswd->bhsw', q, kg) * scale
        logits = torch.where(mask[None, None, :, :], logits, -1000000000.0)
        attn = _softmax(logits, axis=-1)
        o = torch.einsum('bhsw,bhswd->bhsd', attn, vg)
        return (lambda x, *d: x.permute(*d))(o, 0, 2, 1, 3).reshape(B, S, D) @ wo

    def _B_ref(x, w_in, w_sp, b_sp, w_out):
        B, S, D = x.shape
        F = w_in.shape[-1]
        Fh = F // 2
        z = _gelu(torch.einsum('bsd,df->bsf', x, w_in))
        z1 = z[..., :Fh].clone()
        z2 = _layernorm(z[..., Fh:], axis=-1)
        g = torch.einsum('ts,bsf->btf', w_sp, z2) + b_sp[None, :, None]
        return torch.einsum('bsf,fd->bsd', z1 * g, w_out)
    x = A_x
    xn = _layernorm(x, axis=-1)
    return x + _A_ref(xn, A_wqkv, A_wo) + _B_ref(xn, B_w_in, B_w_sp, B_b_sp, B_w_out)
```

```python
import re

REG_RE = re.compile(r'^(-?)(\|?)([vas])(?:\[(\d+):(\d+)\]|(\d+))\|?$')


def regs_of(tok):
    tok = tok.strip()
    if tok == 'vcc':
        return [('s', 106), ('s', 107)]
    if tok == 'exec':
        return [('s', 126), ('s', 127)]
    if tok == 'm0':
        return [('s', 124)]
    if tok in ('vcc_lo',):
        return [('s', 106)]
    m = REG_RE.match(tok)
    if not m:
        return []
    k = m.group(3)
    if m.group(4) is not None:
        return [(k, i) for i in range(int(m.group(4)), int(m.group(5)) + 1)]
    return [(k, int(m.group(6)))]


TRANS = ('v_exp_f32', 'v_log_f32', 'v_rcp_f32', 'v_rsq_f32', 'v_sqrt_f32', 'v_sin_f32', 'v_cos_f32')


class Ins:
    __slots__ = ('text', 'mn', 'ops', 'kind', 'wr', 'rd', 'tok', 'waits', 'shadow', 'mod', 'srcC', 'srcAB',
                 'data', 'wide', 'raw')

    def __init__(self, text, tok=None, waits=None, shadow=False, raw=False):
        self.text = text
        self.tok = tok
        self.waits = waits or []
        self.shadow = shadow
        self.raw = raw
        self.wr, self.rd = [], []
        self.srcC, self.srcAB, self.data = [], [], []
        self.wide = False
        t = text.split(';')[0].strip()
        if raw or not t or t.endswith(':') or t.startswith('.'):
            self.kind = 'label' if t.endswith(':') else 'none'
            self.mn = ''
            self.ops = []
            self.mod = ''
            return
        parts = t.split(None, 1)
        self.mn = parts[0]
        rest = parts[1] if len(parts) > 1 else ''
        ops = [o.strip() for o in rest.split(',')] if rest else []
        joined = rest
        m = re.search(r'\s(offen|offset|op_sel|neg_lo|neg_hi|row_|quad_perm|bank_mask|sc0|sc1|nt|lds|clamp|bound_ctrl|glc)', ' ' + joined)
        if m:
            cut = m.start()
            self.mod = joined[cut:] if cut > 0 else joined
            joined = joined[:max(cut - 0, 0)]
            ops = [o.strip() for o in joined.split(',') if o.strip()]
        else:
            self.mod = ''
        self.ops = ops
        mn = self.mn
        R = regs_of
        if mn.startswith('v_mfma'):
            self.kind = 'mfma'
            self.wr = R(ops[0])
            self.srcAB = R(ops[1]) + R(ops[2])
            self.srcC = R(ops[3])
            self.rd = self.srcAB + self.srcC
        elif mn.startswith('v_cmp'):
            self.kind = 'valu'
            self.wr = R(ops[0])
            for o in ops[1:]:
                self.rd += R(o)
        elif mn.startswith('v_readfirstlane') or mn.startswith('v_readlane'):
            self.kind = 'valu'
            self.wr = R(ops[0])
            for o in ops[1:]:
                self.rd += R(o)
        elif mn.startswith('v_permlane') or mn.startswith('v_swap'):
            self.kind = 'valu'
            self.wr = R(ops[0]) + R(ops[1])
            self.rd = list(self.wr)
        elif mn.startswith('v_'):
            self.kind = 'valu'
            self.wr = R(ops[0])
            for o in ops[1:]:
                self.rd += R(o)
            if mn.startswith('v_fmac') or mn.startswith('v_dot2c') or '_dpp' in mn or mn.startswith('v_writelane'):
                self.rd += self.wr
            if mn.startswith('v_cndmask') and len(ops) == 3:
                self.rd += R('vcc')
            if mn.startswith('v_add_co') or mn.startswith('v_addc_co'):
                self.wr += R(ops[1])
        elif mn.startswith('ds_read') or mn.startswith('ds_bpermute') or mn.startswith('ds_swizzle'):
            self.kind = 'ldsr'
            self.wr = R(ops[0])
            for o in ops[1:]:
                self.rd += R(o)
        elif mn.startswith('ds_write') or mn.startswith('ds_add'):
            self.kind = 'ldsw'
            for o in ops:
                self.rd += R(o)
        elif mn.startswith('buffer_load') or mn.startswith('global_load'):
            if ' lds' in ' ' + self.mod:
                self.kind = 'dma'
                for o in ops:
                    self.rd += R(o)
                self.rd += R('m0')
            else:
                self.kind = 'vld'
                self.wr = R(ops[0])
                for o in ops[1:]:
                    self.rd += R(o)
                if 'd16' in mn:
                    self.rd += self.wr
        elif mn.startswith('buffer_store') or mn.startswith('global_store') or mn.startswith('buffer_atomic'):
            self.kind = 'vst'
            for o in ops:
                self.rd += R(o)
            self.data = R(ops[0]) if mn.startswith('buffer') else R(ops[1])
            self.wide = mn.endswith('x4') or mn.endswith('x3')
        elif mn.startswith('s_load') or mn.startswith('s_buffer_load') or mn.startswith('s_memtime') or mn.startswith('s_memrealtime'):
            self.kind = 'smem'
            self.wr = R(ops[0])
            for o in ops[1:]:
                self.rd += R(o)
        elif mn == 's_waitcnt':
            self.kind = 'wait'
        elif mn == 's_nop':
            self.kind = 'nop'
        elif mn.startswith('s_cbranch') or mn == 's_branch':
            self.kind = 'branch'
            if 'vcc' in mn:
                self.rd = R('vcc')
        elif mn.startswith('s_cmp') or mn.startswith('s_bitcmp'):
            self.kind = 'salu'
            for o in ops:
                self.rd += R(o)
        elif mn in ('s_barrier', 's_endpgm', 's_sleep', 's_setprio'):
            self.kind = 'misc'
        elif mn.startswith('s_'):
            self.kind = 'salu'
            self.wr = R(ops[0])
            for o in ops[1:]:
                self.rd += R(o)
            if 'saveexec' in mn:
                self.wr += R('exec')
        else:
            raise ValueError('unknown instruction: ' + text)


class Tok:
    __slots__ = ('name',)

    def __init__(self, name=''):
        self.name = name


class Seg:
    def __init__(self, name):
        self.name = name
        self.ins = []

    def I(self, text, tok=None, waits=None, shadow=False):
        for line in text.split('\n'):
            line = line.strip()
            if not line:
                continue
            self.ins.append(Ins(line, tok=tok, waits=waits, shadow=shadow))
            waits = None
        return tok

    def raw(self, text):
        self.ins.append(Ins(text, raw=True))

    def label(self, name):
        self.ins.append(Ins(name + ':'))

    def wait(self, *toks):
        self.ins.append(Ins('', waits=list(toks)))

    def extend(self, items):
        for it in items:
            if isinstance(it, Ins):
                self.ins.append(it)
            elif isinstance(it, str):
                self.I(it)
            else:
                self.extend(it)


def mk(text, tok=None, waits=None):
    return Ins(text, tok=tok, waits=waits)


def mkwait(*toks):
    return Ins('', waits=list(toks))


class State:
    def __init__(self):
        self.vm = []
        self.lg = []
        self.sm = []
        self.hist = []

    def copy(self):
        s = State()
        s.vm, s.lg, s.sm, s.hist = list(self.vm), list(self.lg), list(self.sm), list(self.hist)
        return s


def _ov(a, b):
    if not a or not b:
        return False
    sb = set(b)
    return any(x in sb for x in a)


def _isv(r):
    return r[0] in 'va'


def need_states(prev, cur):
    n = 0
    pk, ck = prev.kind, cur.kind
    pv = [r for r in prev.wr if _isv(r)]
    ps = [r for r in prev.wr if r[0] == 's']
    if pk == 'valu':
        if ck == 'mfma' and _ov(pv, cur.rd):
            n = max(n, 2)
        if ck == 'valu':
            if prev.mn.replace('_e32', '').replace('_e64', '') in TRANS and _ov(pv, cur.rd):
                n = max(n, 1)
            if '_dpp' in cur.mn and _ov(pv, cur.rd):
                n = max(n, 2)
            if cur.mn.startswith('v_permlane') and _ov(pv, cur.rd):
                n = max(n, 2)
            if (cur.mn.startswith('v_readlane') or cur.mn.startswith('v_readfirstlane')) and _ov(pv, cur.rd):
                n = max(n, 1)
            if _ov(ps, cur.rd):
                n = max(n, 4 if cur.mn.startswith('v_readlane') or cur.mn.startswith('v_writelane') else 2)
        if ck in ('vld', 'vst', 'dma') and _ov(ps, cur.rd):
            n = max(n, 5)
        if ck in ('salu', 'branch', 'smem') and _ov(ps, cur.rd):
            n = max(n, 2)
    if pk == 'mfma':
        if ck == 'mfma':
            if _ov(prev.wr, cur.srcAB):
                n = max(n, 8)
            if _ov(prev.wr, cur.srcC) and prev.wr != cur.srcC:
                n = max(n, 6)
            if _ov(prev.wr, cur.wr) and prev.wr != cur.srcC:
                n = max(n, 8)
        elif ck in ('valu', 'vst', 'ldsw', 'ldsr', 'vld', 'dma'):
            if _ov(prev.wr, cur.rd) or _ov(prev.wr, cur.wr):
                n = max(n, 8)
            if ck == 'valu' and _ov(prev.srcC, cur.wr):
                n = max(n, 3)
    if pk == 'salu' and ('s', 124) in prev.wr and ck == 'dma':
        n = max(n, 1)
    if pk == 'vst' and prev.wide and ck in ('valu', 'ldsr', 'vld', 'mfma') and _ov(prev.data, cur.wr):
        n = max(n, 2)
    return n


def finish(seg, st=None, stats=None):
    st = st.copy() if st else State()
    out = []

    def emit(ins, states=1):
        out.append(ins.text)
        st.hist.append((ins, states))
        if len(st.hist) > 24:
            st.hist.pop(0)

    def do_wait(vm=None, lg=None):
        parts = []
        if vm is not None:
            assert vm <= 63, 'vmcnt overflow'
            parts.append('vmcnt(%d)' % vm)
            del st.vm[:len(st.vm) - vm]
        if lg is not None:
            lg = min(lg, 15)
            parts.append('lgkmcnt(%d)' % lg)
            if lg == 0:
                st.sm.clear()
            del st.lg[:max(len(st.lg) - lg, 0)]
        emit(Ins('s_waitcnt ' + ' '.join(parts)))

    for ins in seg.ins:
        if ins.raw or ins.kind in ('label',) or (ins.kind == 'none' and not ins.waits):
            if ins.text:
                out.append(ins.text)
            continue
        vm_need = lg_need = None
        touch = ins.rd + ins.wr
        for i, o in enumerate(st.vm):
            if (o.kind == 'vld' and _ov(o.wr, touch)) or (o.tok is not None and o.tok in ins.waits):
                n = len(st.vm) - 1 - i
                vm_need = n if vm_need is None else min(vm_need, n)
        for i, o in enumerate(st.lg):
            if (o.kind == 'ldsr' and _ov(o.wr, touch)) or (o.tok is not None and o.tok in ins.waits):
                n = len(st.lg) - 1 - i
                lg_need = n if lg_need is None else min(lg_need, n)
        for o in st.sm:
            if _ov(o.wr, touch):
                lg_need = 0
        if lg_need is not None and st.sm:
            lg_need = 0
        if ins.shadow:
            assert vm_need is None and lg_need is None, 'shadow instruction needs a wait: ' + ins.text
        if vm_need is not None or lg_need is not None:
            do_wait(vm_need, lg_need)
        if ins.kind == 'none':
            continue
        if ins.kind == 'wait':
            m = re.search(r'vmcnt\((\d+)\)', ins.text)
            if m:
                k = int(m.group(1))
                del st.vm[:max(len(st.vm) - k, 0)]
            m = re.search(r'lgkmcnt\((\d+)\)', ins.text)
            if m:
                k = int(m.group(1))
                if k == 0:
                    st.sm.clear()
                del st.lg[:max(len(st.lg) - k, 0)]
            emit(ins)
            continue
        dist = 0
        pad = 0
        for prev, states in reversed(st.hist):
            need = need_states(prev, ins)
            if need > dist:
                pad = max(pad, need - dist)
            dist += states
            if dist >= 12:
                break
        while pad > 0:
            k = min(pad, 16)
            emit(Ins('s_nop %d' % (k - 1)), k)
            if stats is not None:
                stats['nop'] = stats.get('nop', 0) + k
            pad -= k
        states = 1
        if ins.kind == 'nop':
            states = int(ins.ops[0]) + 1
        emit(ins, states)
        if ins.shadow:
            continue
        if ins.kind in ('vld', 'vst', 'dma'):
            st.vm.append(ins)
            assert len(st.vm) <= 63, 'too many vmem ops in flight at ' + ins.text
        elif ins.kind in ('ldsr', 'ldsw'):
            st.lg.append(ins)
            if len(st.lg) > 15 and stats is not None:
                stats['lg_over'] = stats.get('lg_over', 0) + 1
        elif ins.kind == 'smem':
            st.sm.append(ins)
    return out, st


def interleave(main, bg, every=1, start=0):
    out = []
    bg = list(bg)
    c = 0
    for i, m in enumerate(main):
        out.append(m)
        if i >= start and bg:
            c += 1
            if c >= every:
                out.append(bg.pop(0))
                c = 0
    out += bg
    return out
```

```python
import sys, struct, math
from asmlib import *

KN = "parallel_sum__sliding_local_dilated__mixer_gmlp__prompt_kernel"
STAMP = '--stamp' in sys.argv

WS_ZF, WS_Z1F, WS_OF, WS_HF = 0x4000, 0x8000, 0xC000, 0x10000
WS_STA, WS_STB = 0x20000, 0x60000
WS_Z2N, WS_Z1R, WS_O, WS_H = 0x100000, 0x500000, 0x900000, 0xB00000
WS_DBG = 0xF00000
WS_SIZE = 0x1000000
L_HALO, L_MISC, L_PRIV = 73728, 90112, 98304
LDS_BYTES = 163840
PHI = 0x9E3779B9
SPIN = 1 << 15


def f2u(x):
    return struct.unpack('<I', struct.pack('<f', x))[0]


def V(i, n=1):
    return 'v%d' % i if n == 1 else 'v[%d:%d]' % (i, i + n - 1)


def A(i, n=1):
    return 'a%d' % i if n == 1 else 'a[%d:%d]' % (i, i + n - 1)


def S(i, n=1):
    return 's%d' % i if n == 1 else 's[%d:%d]' % (i, i + n - 1)


sX, sW, sS, sWS, sWO, sWOUT, sOUT, sB, sDBG = (S(i, 4) for i in (8, 12, 16, 20, 24, 28, 32, 36, 40))
sWave, sRb, sCg, sRho1 = 44, 45, 46, 47
sTb, sJ, sRho2, sTag, sXb, sWc, sSb, sPriv = 70, 71, 72, 73, 74, 75, 76, 77
sFr = 78
sT0, sT1, sT2, sT3 = 82, 83, 84, 85
sLN = 86
sLN2 = 88
sGE = 90
sPar = 92
sB2 = 94
sCnt = 96
sAcc = 98
sTm = 100
sFs1, sFs2 = 3, 4
sGo1, sGo2 = 5, 6
sJl = 7
sSt = 48
sTbl = 68
sRho3 = 69

vLane, vL16, vRd0, vRd1 = 0, 1, 2, 3
vXa, vSa, vWa, vTr = 4, 8, 12, 16
vOnes, vTag, vT0, vT1, vT2 = 24, 28, 29, 30, 31
vB = 32
NB = 8


def xreg(i, b):
    return A(128 + 8 * i + 4 * b, 4)


def sreg(i, bb):
    if i < 8:
        return A(16 * i + 4 * bb, 4)
    if i < 12:
        return V(192 + 16 * (i - 8) + 4 * bb, 4)
    return A(128 + 16 * (i - 12) + 4 * bb, 4)


def mfma(d, a, b, c):
    return 'v_mfma_f32_16x16x32_bf16 %s, %s, %s, %s' % (d, a, b, c)


nstamp = [0]


def stamp(seg, idx):
    if STAMP:
        seg.I('s_memtime s[100:101]')
        seg.I('s_mov_b32 %s, s100' % S(sSt + idx))


uid = [0]


def lab(p):
    uid[0] += 1
    return '%s_%d' % (p, uid[0])


tail_code = []


def prologue():
    g = Seg('pro')
    g.I('s_cmp_ge_u32 s2, 256')
    g.I('s_cbranch_scc1 L_end')
    g.I('s_load_dwordx16 s[48:63], s[0:1], 0')
    g.I('s_load_dwordx4 s[64:67], s[0:1], 64')
    g.I('s_load_dwordx2 s[68:69], s[0:1], 80')
    g.I('v_lshrrev_b32 v29, 6, v0')
    g.I('v_and_b32 v0, 63, v0')
    g.I('v_readfirstlane_b32 %s, v29' % S(sWave))
    g.I('v_lshlrev_b32 %s, 4, v0' % V(vL16))
    g.I('s_and_b32 s82, s2, 7')
    g.I('s_lshr_b32 s83, s2, 3')
    g.I('s_and_b32 s84, s82, 3')
    g.I('s_lshl_b32 s84, s84, 2')
    g.I('s_lshr_b32 s85, s83, 3')
    g.I('s_add_u32 %s, s84, s85' % S(sRb))
    g.I('s_and_b32 %s, s83, 7' % S(sCg))
    g.I('s_lshl_b32 s85, s85, 1')
    g.I('s_add_u32 s85, s85, %s' % S(sCg))
    g.I('s_and_b32 %s, s85, 7' % S(sRho1))
    g.I('s_lshr_b32 s97, s83, 2')
    g.I('s_and_b32 %s, s83, 3' % S(sJl))
    g.I('s_lshr_b32 s84, s82, 1')
    g.I('s_lshl_b32 s84, s84, 3')
    g.I('s_add_u32 %s, s84, s97' % S(sTb))
    g.I('s_and_b32 s84, s82, 1')
    g.I('s_lshl_b32 s84, s84, 2')
    g.I('s_add_u32 %s, s84, %s' % (S(sJ), S(sJl)))
    g.I('s_lshl_b32 s84, %s, 1' % S(sJl))
    g.I('s_add_u32 s84, s84, s97')
    g.I('s_and_b32 %s, s84, 7' % S(sRho2))
    g.I('s_lshr_b32 s96, s82, 2')
    g.I('s_lshl_b32 s84, %s, 14' % S(sWave))
    g.I('s_add_u32 %s, s84, %d' % (S(sPriv), L_PRIV))
    g.I('s_lshl_b32 s84, %s, 17' % S(sRb))
    g.I('s_lshl_b32 s85, %s, 15' % S(sWave))
    g.I('s_add_u32 %s, s84, s85' % S(sXb))
    g.I('s_lshl_b32 s84, %s, 18' % S(sTb))
    g.I('s_lshl_b32 s85, %s, 10' % S(sWave))
    g.I('s_add_u32 %s, s84, s85' % S(sSb))
    g.I('v_lshrrev_b32 v29, 3, v0')
    g.I('v_lshrrev_b32 v30, 4, v0')
    g.I('v_and_b32 v31, 7, v0')
    g.I('v_xor_b32 v31, v31, v30')
    g.I('v_lshlrev_b32 v31, 4, v31')
    g.I('v_lshl_add_u32 v4, v29, 10, v31')
    g.I('v_xor_b32 v5, 64, v4')
    g.I('v_add_u32 v5, %d, v5' % (8192 - 1024))
    g.I('v_add_u32 v6, %d, v4' % (2 * (8192 - 1024)))
    g.I('v_add_u32 v7, %d, v5' % (2 * (8192 - 1024)))
    g.I('v_and_b32 v32, 15, v0')
    g.I('v_lshrrev_b32 v33, 1, v32')
    g.I('v_xor_b32 v33, v33, v30')
    g.I('v_lshlrev_b32 v33, 4, v33')
    g.I('v_lshl_add_u32 v33, v32, 7, v33')
    g.I('v_add_u32 v2, %s, v33' % S(sPriv))
    g.I('v_xor_b32 v3, 64, v2')
    g.I('s_waitcnt lgkmcnt(0)')
    g.I('s_cmp_eq_u32 s96, 0')
    g.I('s_mov_b32 s8, s48\ns_mov_b32 s9, s49\ns_mov_b32 s10, 0x200000\ns_mov_b32 s11, 0x20000')
    g.I('s_cselect_b32 s12, s56, s50\ns_cselect_b32 s13, s57, s51\ns_mov_b32 s14, 0x180000\ns_cselect_b32 s14, 0x1c0000, s14\ns_mov_b32 s15, 0x20000')
    g.I('s_mov_b32 s20, s68\ns_mov_b32 s21, s69\ns_mov_b32 s22, 0x%x\ns_mov_b32 s23, 0x20000' % WS_SIZE)
    g.I('s_sub_u32 s16, s58, 3072\ns_subb_u32 s17, s59, 0\ns_mov_b32 s18, 0x%x\ns_mov_b32 s19, 0x20000' % (0x800000 + 3072))
    g.I('s_mov_b32 s24, s52\ns_mov_b32 s25, s53\ns_mov_b32 s26, 0x80000\ns_mov_b32 s27, 0x20000')
    g.I('s_mov_b32 s28, s62\ns_mov_b32 s29, s63\ns_mov_b32 s30, 0xe0000\ns_mov_b32 s31, 0x20000')
    g.I('s_mov_b32 s32, s64\ns_mov_b32 s33, s65\ns_mov_b32 s34, 0x200000\ns_mov_b32 s35, 0x20000')
    g.I('s_mov_b32 s36, s60\ns_mov_b32 s37, s61\ns_mov_b32 s38, 0x1000\ns_mov_b32 s39, 0x20000')
    g.I('s_mov_b32 s40, s66\ns_mov_b32 s41, s67\ns_mov_b32 s42, 256\ns_mov_b32 s43, 0x20000')
    g.I('s_mov_b32 %s, s97' % S(sTbl))
    stamp(g, 0)
    g.I('buffer_load_dword %s, off, %s, 0 sc1' % (V(vTag), sWS))
    g.I('s_cmp_eq_u32 s96, 0')
    g.I('s_cbranch_scc0 L_p1q')
    return g


def consts(g):
    g.I('s_mov_b32 %s, 0x%x' % (S(sLN), f2u(1.0 / 512)))
    g.I('s_mov_b32 %s, 0x%x' % (S(sLN + 1), f2u(1e-5)))
    g.I('s_mov_b32 %s, 0x%x' % (S(sLN2), f2u(1.0 / 896)))
    g.I('s_mov_b32 %s, 0x%x' % (S(sLN2 + 1), f2u(1e-5)))
    c1 = -2.0 * math.sqrt(2.0 / math.pi) * math.log2(math.e)
    g.I('s_mov_b32 %s, 0x%x' % (S(sGE), f2u(c1 * 0.044715)))
    g.I('s_mov_b32 %s, 0x%x' % (S(sGE + 1), f2u(c1)))
    g.I('s_mov_b32 %s, 0xaaaaaaaa\ns_mov_b32 %s, 0xaaaaaaaa' % (S(sPar), S(sPar + 1)))
    g.I('s_mov_b32 %s, 0xcccccccc\ns_mov_b32 %s, 0xcccccccc' % (S(sB2), S(sB2 + 1)))
    for i in range(4):
        g.I('v_mov_b32 %s, 0x3f803f80' % V(vOnes + i))
    g.I('v_lshrrev_b32 v29, 3, v0')
    g.I('v_lshrrev_b32 v30, 4, v0')
    g.I('v_and_b32 v31, 7, v0')
    g.I('v_xor_b32 v31, v31, v30')
    g.I('v_lshlrev_b32 v31, 4, v31')
    g.I('v_lshl_add_u32 v31, v29, 12, v31')
    g.I('v_xor_b32 v30, 64, v31')
    g.I('s_lshl_b32 s82, %s, 16' % S(sWave))
    g.I('s_add_u32 s83, s82, 0x10000')
    g.I('s_and_b32 s83, s83, 0x30000')
    g.I('s_add_u32 s84, s82, 3072')
    g.I('v_add_u32 v8, s84, v31')
    g.I('s_add_u32 s84, s82, %d' % (8 * 4096 + 2048))
    g.I('v_add_u32 v9, s84, v30')
    g.I('s_add_u32 s84, s83, 1024')
    g.I('v_add_u32 v10, s84, v31')
    g.I('s_add_u32 s84, s83, %d' % (8 * 4096))
    g.I('v_add_u32 v11, s84, v30')


def tag_publish(g):
    g.I('v_add_u32 %s, 0x%x, %s' % (V(vTag), PHI, V(vTag)))
    g.I('v_cmp_eq_u32 vcc, 0, %s' % V(vTag))
    g.I('v_mov_b32 v29, 0x%x' % PHI)
    g.I('v_cndmask_b32 %s, %s, v29, vcc' % (V(vTag), V(vTag)))
    g.I('s_lshl_b32 s82, s2, 2')
    g.I('s_or_b32 s82, s82, %s' % S(sWave))
    g.I('s_lshl_b32 s82, s82, 6')
    g.I('v_or_b32 v29, s82, v0')
    g.I('v_cmp_eq_u32 vcc, 0, v29')
    g.I('v_mov_b32 v30, 0x7ffffff0')
    g.I('v_cndmask_b32 v29, v30, 0, vcc')
    g.I('buffer_store_dword %s, v29, %s, 0 offen sc1' % (V(vTag), sWS))
    g.I('buffer_store_dword %s, v29, %s, 0 offen sc1' % (V(vTag), sDBG))


def tag_fetch(g):
    g.I('buffer_load_dword %s, off, %s, 0 sc1' % (V(vTag), sDBG))


def tag_check(g):
    ls, lr = lab('L_tagslow'), lab('L_tagret')
    g.I('v_readfirstlane_b32 %s, %s' % (S(sTag), V(vTag)))
    g.I('s_cmp_eq_u32 %s, 0' % S(sTag))
    g.I('s_cbranch_scc1 %s' % ls)
    g.label(lr)
    tail_code.append("""%s:
s_mov_b32 s%d, %d
%s_l:
s_sleep 1
buffer_load_dword v%d, off, %s, 0 sc1
s_waitcnt vmcnt(0)
v_readfirstlane_b32 s%d, v%d
s_sub_u32 s%d, s%d, 1
s_cbranch_scc1 %s
s_cmp_eq_u32 s%d, 0
s_cbranch_scc1 %s_l
s_branch %s""" % (ls, sCnt, SPIN, ls, vTag, sDBG, sTag, vTag, sCnt, sCnt, lr, sTag, ls, lr))


def poll(g, loads, tagregs, pre=None):
    ls, lr = lab('L_pslow'), lab('L_pret')
    chk = []
    for i, r in enumerate(tagregs):
        if i == 0:
            chk.append('v_cmp_ne_u32 %s, %s, %s' % (S(sAcc, 2), V(r), V(vTag)))
        else:
            chk.append('v_cmp_ne_u32 vcc, %s, %s' % (V(r), V(vTag)))
            chk.append('s_nop 1')
            chk.append('s_or_b64 %s, %s, vcc' % (S(sAcc, 2), S(sAcc, 2)))
    chk.append('s_nop 1')
    chk.append('s_cmp_lg_u64 %s, 0' % S(sAcc, 2))
    for c in chk:
        g.I(c)
    g.I('s_cbranch_scc1 %s' % ls)
    g.label(lr)
    t = ['%s:' % ls, 's_mov_b32 s%d, %d' % (sCnt, SPIN), '%s_l:' % ls, 's_sleep 1']
    t += loads
    t += ['s_waitcnt vmcnt(0)', 's_sub_u32 s%d, s%d, 1' % (sCnt, sCnt), 's_cbranch_scc1 %s' % lr]
    t += chk
    t += ['s_cbranch_scc1 %s_l' % ls, 's_branch %s' % lr]
    tail_code.append('\n'.join(t))


def flag_store(g, toks, soff_lines, sreg_):
    for l in soff_lines:
        g.I(l)
    g.wait(*toks)
    g.I('buffer_store_dword %s, off, %s, %s sc1' % (V(vTag), sWS, S(sreg_)))


class Priv:
    def __init__(self):
        self.dma = {}
        self.rd = {}
        self.sh = 0

    def issue(self, n):
        out = []
        if n - 4 in self.rd:
            out.append(mkwait(self.rd[n - 4]))
        t = self.dma[n] = Tok('P%d' % n)
        out.append(mk('s_add_u32 m0, %s, %d' % (S(sPriv), (n & 3) * 4096)))
        if n < 8:
            out.append(mk('s_add_u32 s82, %s, %d' % (S(sRho1), n)))
            out.append(mk('s_and_b32 s82, s82, 7'))
            out.append(mk('s_lshl_b32 s82, s82, 7'))
            out.append(mk('s_add_u32 s82, s82, %s' % S(sXb)))
            for q in range(4):
                out.append(mk('buffer_load_dwordx4 %s, %s, s82 offen offset:%d lds' % (V(vXa + q), sX, 1024 * q), tok=t))
        else:
            gi = n - 8
            pp, h = gi >> 1, gi & 1
            if h != self.sh:
                for q in range(4):
                    out.append(mk('v_xor_b32 %s, 0x20000, %s' % (V(vSa + q), V(vSa + q))))
                self.sh = h
            out.append(mk('s_add_u32 s82, %s, %d' % (S(sRho2), pp)))
            out.append(mk('s_and_b32 s82, s82, 7'))
            out.append(mk('s_lshl_b32 s82, s82, 7'))
            out.append(mk('s_add_u32 s82, s82, %s' % S(sSb)))
            for q in range(4):
                out.append(mk('buffer_load_dwordx4 %s, %s, s82 offen offset:%d lds' % (V(vSa + q), sS, 1024 * q), tok=t))
        return out

    def read(self, n):
        out = [mkwait(self.dma[n])]
        t = self.rd[n] = Tok('PR%d' % n)
        for e in range(2):
            for b in range(2):
                if n < 8:
                    dst = xreg(2 * n + e, b)
                else:
                    gi = n - 8
                    dst = sreg(2 * (gi >> 1) + e, 2 * (gi & 1) + b)
                out.append(mk('ds_read_b128 %s, %s offset:%d' % (dst, V(vRd0 + e), (n & 3) * 4096 + b * 2048), tok=t))
        return out


def run_pass(g, uses, opens, L=5):
    N = len(uses)
    opened = set()

    def reads(u):
        st, rds, _ = uses[u]
        if st not in opened:
            opened.add(st)
            g.extend(opens.get(st, []))
        base = vB + 4 * (u % NB)
        for h, r in enumerate(rds):
            g.I(r % V(base + 2 * h, 2))

    for u in range(min(L, N)):
        reads(u)
    for u in range(N):
        base = vB + 4 * (u % NB)
        for m in uses[u][2]:
            g.I(m.replace('%B', V(base, 4)))
        if u + L < N:
            reads(u + L)


def row_stats(g, vSM, vSSd, n):
    for i in range(0, n, 2):
        g.I('v_pk_mul_f32 %s, %s, %s op_sel_hi:[1,0]' % (V(vSM + i, 2), V(vSM + i, 2), S(sLN, 2)))
        g.I('v_pk_mul_f32 %s, %s, %s op_sel_hi:[1,0]' % (V(vSSd + i, 2), V(vSSd + i, 2), S(sLN, 2)))
    for i in range(0, n, 2):
        g.I('v_pk_fma_f32 %s, %s, %s, %s neg_lo:[1,0,0] neg_hi:[1,0,0]' % (V(vSSd + i, 2), V(vSM + i, 2), V(vSM + i, 2), V(vSSd + i, 2)))
    for i in range(n):
        g.I('v_max_f32 %s, 0, %s' % (V(vSSd + i), V(vSSd + i)))
    for i in range(0, n, 2):
        g.I('v_pk_add_f32 %s, %s, %s op_sel:[0,1] op_sel_hi:[1,1]' % (V(vSSd + i, 2), V(vSSd + i, 2), S(sLN, 2)))
    for i in range(n):
        g.I('v_rsq_f32 %s, %s' % (V(vSSd + i), V(vSSd + i)))
    for i in range(0, n, 2):
        g.I('v_pk_mul_f32 %s, %s, %s' % (V(vSM + i, 2), V(vSM + i, 2), V(vSSd + i, 2)))


def to_lane_layout(g, src4, dst, vaddr, t0, t1):
    g.I('v_cndmask_b32 %s, %s, %s, %s' % (V(t0), V(src4), V(src4 + 1), S(sPar, 2)))
    g.I('v_cndmask_b32 %s, %s, %s, %s' % (V(t1), V(src4 + 2), V(src4 + 3), S(sPar, 2)))
    g.I('v_cndmask_b32 %s, %s, %s, %s' % (V(t0), V(t0), V(t1), S(sB2, 2)))
    g.I('ds_bpermute_b32 %s, %s, %s' % (V(dst), V(vaddr), V(t0)))


def gelu_pairs(pairs, tmp, packed=True):
    st = [[] for _ in range(8)]
    for y, t in zip(pairs, tmp):
        Y, T = V(y, 2), V(t, 2)
        st[0].append('v_pk_mul_f32 %s, %s, %s' % (T, Y, Y))
        st[1].append('v_pk_fma_f32 %s, %s, %s, %s op_sel:[0,0,1] op_sel_hi:[1,0,1]' % (T, T, S(sGE, 2), S(sGE, 2)))
        st[2].append('v_pk_mul_f32 %s, %s, %s' % (T, T, Y))
        st[3].append('v_exp_f32 %s, %s' % (V(t), V(t)))
        st[3].append('v_exp_f32 %s, %s' % (V(t + 1), V(t + 1)))
        st[4].append('v_pk_add_f32 %s, %s, 1.0 op_sel_hi:[1,0]' % (T, T))
        st[5].append('v_rcp_f32 %s, %s' % (V(t), V(t)))
        st[5].append('v_rcp_f32 %s, %s' % (V(t + 1), V(t + 1)))
        st[6].append('v_pk_mul_f32 %s, %s, %s' % (Y, Y, T))
    return [x for s_ in st for x in s_]


def p1z(n1):
    n2 = 14 - n1
    g = Seg('p1z%d' % n1)
    P = Priv()
    acc1 = 64
    acc2 = 64 + 8 * n1
    vSM, vSS, vCS = acc2, acc2 + 8, acc2 + 16
    vCS2, vRt = 176, 184
    wtok = {}

    def w_issue(s):
        t = wtok[s] = Tok('W%d' % s)
        out = [mk('s_lshl_b32 s83, %s, 12' % S(sWave)),
               mk('s_add_u32 m0, s83, %d' % ((s & 3) * 16384)),
               mk('s_add_u32 s82, %s, %d' % (S(sRho1), s & 7)),
               mk('s_and_b32 s82, s82, 7'),
               mk('s_mul_i32 s82, s82, %d' % (64 * 3584)),
               mk('s_add_u32 s82, s82, %s' % S(sWc if s < 8 else sT3))]
        for t4 in range(4):
            out.append(mk('buffer_load_dwordx4 %s, %s, s82 offen offset:%d lds' % (V(vWa + t4), sW, 1024 * t4), tok=t))
        return out

    def block(qexpr_lines, fs, go):
        for l in qexpr_lines:
            g.I(l)
        g.I('s_lshr_b32 s83, s82, 1')
        g.I('s_and_b32 s84, s83, 1')
        g.I('s_lshl_b32 s84, s84, 1')
        g.I('s_sub_u32 s84, 8, s84')
        g.I('s_and_b32 s82, s82, 1')
        g.I('s_mul_i32 s84, s84, s82')
        g.I('s_mul_i32 s83, s83, 14')
        g.I('s_add_u32 s83, s83, s84')
        g.I('s_and_b32 %s, s83, 3' % S(go))
        g.I('s_and_b32 %s, s83, 0xfc' % S(fs))

    block(['s_mov_b32 s82, %s' % S(sCg)], sFs1, sGo1)
    g.I('s_lshl_b32 %s, %s, 5' % (S(sWc), S(sFs1)))
    g.I('s_add_u32 %s, %s, 1792' % (S(sWc), S(sWc)))
    g.I('v_lshrrev_b32 v30, 4, v0')
    g.I('v_bfe_u32 v29, v0, 1, 3')
    g.I('v_xor_b32 v29, v29, v30')
    g.I('v_lshlrev_b32 v29, 5, v29')
    g.I('v_and_b32 v31, 1, v0')
    g.I('v_lshl_or_b32 v29, v31, 4, v29')
    g.I('s_lshl_b32 s82, %s, 4' % S(sWave))
    g.I('v_add_u32 v30, s82, v30')
    g.I('v_mul_u32_u24 v30, 3584, v30')
    g.I('v_add_u32 v12, v30, v29')
    g.I('v_add_u32 v13, %d, v12' % (4 * 3584 - 1024))
    g.I('v_xor_b32 v29, 128, v29')
    g.I('v_add_u32 v14, v30, v29')
    g.I('v_add_u32 v15, %d, v14' % (12 * 3584 - 3072))
    g.I('v_add_u32 v14, %d, v14' % (8 * 3584 - 2048))
    for s in range(3):
        g.extend(P.issue(s))
        g.extend(w_issue(s))
    consts(g)
    block(['s_xor_b32 s82, %s, 1' % S(sCg)], sFs2, sGo2)
    g.I('s_lshl_b32 %s, %s, 5' % (S(sT3), S(sFs2)))

    def tr_setup(n, go):
        g.I('v_bfe_u32 v29, v0, 2, 2')
        g.I('v_lshrrev_b32 v30, 4, v0')
        g.I('v_lshl_add_u32 v31, v30, 3, v29')
        g.I('v_lshlrev_b32 v31, 8, v31')
        g.I('v_and_b32 v30, 1, v30')
        g.I('v_lshl_or_b32 v29, v30, 2, v29')
        g.I('v_and_b32 v30, 3, v0')
        g.I('v_lshl_or_b32 v31, v30, 3, v31')
        for pp in range(n // 2):
            g.I('s_add_u32 s82, %s, %d' % (S(sWave), pp))
            g.I('s_cmp_ge_u32 s82, %d' % (n // 2))
            g.I('s_cselect_b32 s83, %d, 0' % (n // 2))
            g.I('s_sub_u32 s82, s82, s83')
            g.I('s_lshl_b32 s82, s82, 1')
            g.I('s_add_u32 %s, s82, %s' % (S(sFr + pp), S(go)))
            g.I('v_xor_b32 v30, %s, v29' % S(sFr + pp))
            g.I('v_lshl_or_b32 %s, v30, 5, v31' % V(vTr + 2 * pp))
            g.I('v_xor_b32 %s, 32, %s' % (V(vTr + 2 * pp + 1), V(vTr + 2 * pp)))

    tr_setup(n1, sGo1)
    tag_publish(g)

    def uses_for(n, s0, acc, cs, first_pass):
        us = []
        for i in range(16):
            s, e = s0 + (i >> 1), i & 1
            for pos in range(n):
                off = (s & 3) * 16384 + e * 8192
                rds = ['ds_read_b64_tr_b16 %%s, %s offset:%d' % (V(vTr + pos), off + 1024 * h) for h in range(2)]
                ms = []
                for b in range(2):
                    d = V(acc + 8 * pos + 4 * b, 4)
                    c = d if i else '0'
                    ms.append(mfma(d, xreg(i, b), '%B', c) if first_pass else mfma(d, '%B', xreg(i, b), c))
                if pos < 2:
                    d = V(cs + 4 * pos, 4)
                    c = d if i else '0'
                    ms.append(mfma(d, V(vOnes, 4), '%B', c) if first_pass else mfma(d, '%B', V(vOnes, 4), c))
                elif first_pass and pos < 6:
                    b = (pos - 2) & 1
                    if pos < 4:
                        d = V(vSM + 4 * b, 4)
                        ms.append(mfma(d, xreg(i, b), V(vOnes, 4), d if i else '0'))
                    else:
                        d = V(vSS + 4 * b, 4)
                        ms.append(mfma(d, xreg(i, b), xreg(i, b), d if i else '0'))
                us.append((s, rds, ms))
        return us

    class LazyOpens(dict):
        def get(self, s, default=None):
            it = [mkwait(wtok[s], *( [P.dma[s]] if s < 8 else [])), mk('s_barrier')]
            if s >= 1 and s + 2 < 16:
                it += w_issue(s + 2)
            if 1 <= s < 8:
                it += P.issue(s + 2)
            if s < 8:
                it += P.read(s)
            if s == 3:
                it.append(mk('buffer_load_dword %s, off, %s, 0 sc1' % (V(vTag), sDBG)))
            return it

    stamp(g, 1)
    run_pass(g, uses_for(n1, 0, acc1, vCS, True), LazyOpens())
    stamp(g, 2)
    vCsv = acc2 + 24
    vSSd = acc2 + 16
    vS1 = acc2 + 32
    g.I('v_and_b32 v29, 15, v0')
    g.I('v_lshlrev_b32 v29, 2, v29')
    g.I('v_add_u32 v29, %d, v29' % L_MISC)
    g.I('s_lshl_b32 s82, %s, 6' % S(sFr))
    g.I('v_add_u32 v30, s82, v29')
    tcs = Tok('cs')
    g.I('ds_write_b32 v30, %s' % V(vCS), tok=tcs)
    g.I('ds_write_b32 v30, %s offset:64' % V(vCS + 4), tok=tcs)
    g.I('v_lshrrev_b32 v31, 4, v0')
    g.I('v_mul_u32_u24 v31, 80, v31')
    g.wait(tcs)
    for b in range(2):
        for r in range(4):
            g.I('ds_bpermute_b32 %s, v31, %s offset:%d' % (V(vSSd + 4 * b + r), V(vSS + 4 * b + r), 4 * r))
    g.I('s_barrier')
    for pp in range(n1 // 2):
        g.I('s_lshl_b32 s82, %s, 6' % S(sFr + pp))
        g.I('v_add_u32 v30, s82, v29')
        g.I('ds_read_b32 %s, v30' % V(vCsv + 2 * pp))
        g.I('ds_read_b32 %s, v30 offset:64' % V(vCsv + 2 * pp + 1))
    row_stats(g, vSM, vSSd, 8)
    tag_check(g)
    g.I('v_mov_b32 %s, %s' % (V(vTag), S(sTag)))
    main = []
    for pos in range(n1):
        pr = [acc1 + 8 * pos + 2 * k for k in range(4)]
        tm = [vB + 8 * (pos & 1) + 2 * k for k in range(4)]
        sel = 'op_sel_hi:[1,0]' if pos % 2 == 0 else 'op_sel:[0,1] op_sel_hi:[1,1]'
        cp = V(vCsv + (pos & ~1), 2)
        for k in range(4):
            main.append('v_pk_mul_f32 %s, %s, %s %s' % (V(tm[k], 2), V(vSM + 2 * k, 2), cp, sel))
        for k in range(4):
            main.append('v_pk_fma_f32 %s, %s, %s, %s neg_lo:[0,0,1] neg_hi:[0,0,1]' % (V(pr[k], 2), V(pr[k], 2), V(vSSd + 2 * k, 2), V(tm[k], 2)))
        main += gelu_pairs(pr, tm)
        for k in range(4):
            if pos == 0:
                main.append('v_pk_mul_f32 %s, %s, %s' % (V(vS1 + 8 + 2 * k, 2), V(pr[k], 2), V(pr[k], 2)))
            else:
                main.append('v_pk_fma_f32 %s, %s, %s, %s' % (V(vS1 + 8 + 2 * k, 2), V(pr[k], 2), V(pr[k], 2), V(vS1 + 8 + 2 * k, 2)))
            if pos == 1:
                main.append('v_pk_add_f32 %s, %s, %s' % (V(vS1 + 2 * k, 2), V(pr[k], 2), V(pr[k] - 8, 2)))
            elif pos > 1:
                main.append('v_pk_add_f32 %s, %s, %s' % (V(vS1 + 2 * k, 2), V(pr[k], 2), V(vS1 + 2 * k, 2)))
    bg = []
    for n in range(10, 20):
        bg.append(P.read(n - 2))
        bg.append(P.issue(n))
    g.extend(interleave([mk(m) for m in main], bg, every=len(main) // (len(bg) + 1), start=0))
    stamp(g, 3)
    vW_ = vB
    for k in range(2):
        for r in range(4):
            x0, x1, d = vS1 + 8 * k + r, vS1 + 8 * k + 4 + r, vW_ + 4 * k + r
            g.I('v_add_f32_dpp %s, %s, %s row_ror:8 row_mask:0xf bank_mask:0x3' % (V(d), V(x0), V(x0)))
            g.I('v_add_f32_dpp %s, %s, %s row_ror:8 row_mask:0xf bank_mask:0xc' % (V(d), V(x1), V(x1)))
    vU = vB + 8
    for k in range(2):
        for r in range(2):
            x0, x1, d = vW_ + 4 * k + r, vW_ + 4 * k + r + 2, vU + 2 * k + r
            g.I('v_add_f32_dpp %s, %s, %s row_ror:12 row_mask:0xf bank_mask:0x5' % (V(d), V(x0), V(x0)))
            g.I('v_add_f32_dpp %s, %s, %s row_ror:4 row_mask:0xf bank_mask:0xa' % (V(d), V(x1), V(x1)))
    for qp in ('[1,0,3,2]', '[2,3,0,1]'):
        for k in range(4):
            g.I('v_add_f32_dpp %s, %s, %s quad_perm:%s row_mask:0xf bank_mask:0xf' % (V(vU + k), V(vU + k), V(vU + k), qp))
    vG = vB + 12
    g.I('v_cndmask_b32 %s, %s, %s, %s' % (V(vG), V(vU), V(vU + 1), S(sPar, 2)))
    g.I('v_cndmask_b32 %s, %s, %s, %s' % (V(vG + 2), V(vU + 2), V(vU + 3), S(sPar, 2)))
    g.I('v_mov_b32 %s, %s' % (V(vG + 1), V(vTag)))
    g.I('v_mov_b32 %s, %s' % (V(vG + 3), V(vTag)))
    g.I('v_bfe_u32 v29, v0, 3, 1')
    g.I('v_lshlrev_b32 v29, 4, v29')
    g.I('v_bfe_u32 v30, v0, 4, 2')
    g.I('v_lshl_add_u32 v29, v30, 2, v29')
    g.I('v_bfe_u32 v30, v0, 2, 1')
    g.I('v_lshl_add_u32 v29, v30, 1, v29')
    g.I('v_and_b32 v30, 1, v0')
    g.I('v_add_u32 v29, v29, v30')
    g.I('v_lshlrev_b32 v29, 4, v29')
    g.I('s_lshl_b32 s82, %s, 14' % S(sRb))
    g.I('s_lshl_b32 s83, %s, 9' % S(sWave))
    g.I('s_add_u32 s82, s82, s83')
    g.I('s_add_u32 s82, s82, 0x%x' % WS_STB)
    g.I('s_lshl_b32 s83, %s, 11' % S(sCg))
    g.I('s_add_u32 s83, s83, s82')
    g.I('buffer_store_dwordx4 %s, v29, %s, s83 offen sc1' % (V(vG, 4), sWS))
    g.I('v_and_b32 v30, 15, v0')
    g.I('v_lshrrev_b32 v31, 2, v30')
    g.I('v_lshl_add_u32 v31, v31, 4, v30')
    g.I('v_lshlrev_b32 v31, 2, v31')
    for b in range(2):
        to_lane_layout(g, vSSd + 4 * b, vRt + 2 * b, 31, vB, vB + 1)
        to_lane_layout(g, vSM + 4 * b, vRt + 2 * b + 1, 31, vB + 2, vB + 3)
    vGa = vB + 16
    g.I('v_and_b32 v29, 31, v0')
    g.I('v_lshlrev_b32 v29, 4, v29')
    g.I('v_lshrrev_b32 v30, 5, v0')
    g.I('v_lshl_add_u32 v29, v30, 11, v29')
    lds_ = []
    for i in range(4):
        lds_.append('s_add_u32 s83, s82, %d' % (4096 * i))
        lds_.append('buffer_load_dwordx4 %s, v29, %s, s83 offen sc1' % (V(vGa + 4 * i, 4), sWS))
    for l in lds_:
        g.I(l)
    poll(g, lds_, [vGa + 1 + 2 * i for i in range(8)])
    stamp(g, 4)
    for k in range(2):
        g.I('v_add_f32 %s, %s, %s' % (V(vGa + 2 * k), V(vGa + 2 * k), V(vGa + 4 + 2 * k)))
        g.I('v_add_f32 %s, %s, %s' % (V(vGa + 8 + 2 * k), V(vGa + 8 + 2 * k), V(vGa + 12 + 2 * k)))
    for k in range(2):
        g.I('v_add_f32 %s, %s, %s' % (V(vGa + 2 * k), V(vGa + 2 * k), V(vGa + 8 + 2 * k)))
        g.I('v_mov_b32 %s, %s' % (V(vGa + 2 * k + 1), V(vGa + 2 * k)))
    for k in range(2):
        g.I('v_permlane32_swap_b32 %s, %s' % (V(vGa + 2 * k), V(vGa + 2 * k + 1)))
    for k in range(2):
        g.I('v_add_f32 %s, %s, %s' % (V(vGa + 2 * k), V(vGa + 2 * k), V(vGa + 2 * k + 1)))
    g.I('v_mul_f32 %s, %s, %s' % (V(vGa), S(sLN2), V(vGa)))
    g.I('v_mul_f32 %s, %s, %s' % (V(vGa + 2), S(sLN2), V(vGa + 2)))
    g.I('v_fma_f32 %s, -%s, %s, %s' % (V(vGa + 2), V(vGa), V(vGa), V(vGa + 2)))
    g.I('v_max_f32 %s, 0, %s' % (V(vGa + 2), V(vGa + 2)))
    g.I('v_add_f32 %s, %s, %s' % (V(vGa + 2), S(sLN2 + 1), V(vGa + 2)))
    g.I('v_rsq_f32 %s, %s' % (V(vGa + 2), V(vGa + 2)))
    g.I('v_mul_f32 %s, -%s, %s' % (V(vGa), V(vGa), V(vGa + 2)))
    g.I('s_lshl_b32 s83, %s, 8' % S(sWave))
    g.I('s_add_u32 s83, s83, %d' % (L_MISC + 1024))
    g.I('v_and_b32 v29, 31, v0')
    g.I('v_lshl_add_u32 v29, v29, 2, s83')
    tw = Tok('st2')
    g.I('ds_write_b32 v29, %s' % V(vGa + 2), tok=tw)
    g.I('ds_write_b32 v29, %s offset:128' % V(vGa), tok=tw)
    g.I('v_lshrrev_b32 v30, 4, v0')
    g.I('v_lshl_add_u32 v30, v30, 4, s83')
    g.wait(tw)
    vR2 = vB
    for b in range(2):
        g.I('ds_read_b128 %s, v30 offset:%d' % (V(vR2 + 4 * b, 4), 64 * b))
        g.I('ds_read_b128 %s, v30 offset:%d' % (V(vR2 + 8 + 4 * b, 4), 128 + 64 * b))
    g.I('s_lshl_b32 s82, %s, 2' % S(sRb))
    g.I('s_add_u32 s82, s82, %s' % S(sWave))
    g.I('s_mul_i32 s82, s82, 56')
    g.I('s_add_u32 s82, s82, %s' % S(sFs1))
    g.I('s_lshl_b32 s82, s82, 10')
    g.I('s_add_u32 s82, s82, 0x%x' % WS_Z2N)
    tz = Tok('z2n')
    for pos in range(n1):
        a = acc1 + 8 * pos
        for k in range(4):
            g.I('v_pk_fma_f32 %s, %s, %s, %s' % (V(a + 2 * k, 2), V(a + 2 * k, 2), V(vR2 + 2 * k, 2), V(vR2 + 8 + 2 * k, 2)))
        q = vB + 16 + 4 * (pos & 3)
        for k in range(4):
            g.I('v_cvt_pk_bf16_f32 %s, %s, %s' % (V(q + k), V(a + 2 * k), V(a + 2 * k + 1)))
        if pos % 2 == 0:
            g.I('s_lshl_b32 s83, %s, 10' % S(sFr + pos // 2))
            g.I('s_add_u32 s83, s83, s82')
        for sw in ('v_permlane32_swap_b32', 'v_permlane16_swap_b32'):
            g.I('%s %s, %s' % (sw, V(q), V(q + 2)))
            g.I('%s %s, %s' % (sw, V(q + 1), V(q + 3)))
        g.I('buffer_store_dwordx4 %s, %s, %s, s83 offen offset:%d sc1' % (V(q, 4), V(vL16), sWS, 1024 * (pos & 1)), tok=tz)
    tr_setup(n2, sGo2)
    flag_store(g, [tz], ['s_lshl_b32 s82, %s, 3' % S(sRb), 's_add_u32 s82, s82, %s' % S(sCg), 's_lshl_b32 s82, s82, 7',
                         's_lshl_b32 s83, %s, 2' % S(sWave), 's_add_u32 s82, s82, s83', 's_add_u32 s82, s82, 0x%x' % WS_ZF], 82)
    stamp(g, 5)
    class LazyOpens2(LazyOpens):
        def get(self, s, default=None):
            it = LazyOpens.get(self, s)
            if s == 8:
                it += P.read(18) + P.issue(22 - 2)
            if s == 9:
                it += P.read(19) + P.issue(21)
            if s == 10:
                it += P.issue(22)
            if s == 11:
                it += P.issue(23)
            return it

    run_pass(g, uses_for(n2, 8, acc2, vCS2, False), LazyOpens2())
    stamp(g, 6)
    for n in range(20, 24):
        g.extend(P.read(n))
    g.I('v_lshrrev_b32 v29, 4, v0')
    g.I('v_lshlrev_b32 v29, 4, v29')
    g.I('v_add_u32 v29, %d, v29' % (L_MISC + 512))
    g.I('s_lshl_b32 s82, %s, 6' % S(sFr))
    g.I('v_add_u32 v30, s82, v29')
    tcs = Tok('cs2')
    g.I('ds_write_b128 v30, %s' % V(vCS2, 4), tok=tcs)
    g.I('ds_write_b128 v30, %s offset:64' % V(vCS2 + 4, 4), tok=tcs)
    g.wait(tcs)
    g.I('s_barrier')
    for pp in range(n2 // 2):
        g.I('s_lshl_b32 s82, %s, 6' % S(sFr + pp))
        g.I('v_add_u32 v30, s82, v29')
        g.I('ds_read_b128 %s, v30' % V(vB + 8 * pp, 4))
        g.I('ds_read_b128 %s, v30 offset:64' % V(vB + 8 * pp + 4, 4))
    g.I('s_lshl_b32 s82, %s, 3' % S(sRb))
    g.I('s_lshl_b32 s83, %s, 1' % S(sWave))
    g.I('s_add_u32 s82, s82, s83')
    g.I('s_mul_i32 s82, s82, %d' % (28 * 1024))
    g.I('s_lshl_b32 s83, %s, 9' % S(sFs2))
    g.I('s_add_u32 s82, s82, s83')
    g.I('s_add_u32 s82, s82, 0x%x' % WS_Z1R)
    tz1 = Tok('z1r')
    tq = acc1
    for pp in range(n2 // 2):
        g.I('s_lshl_b32 s83, %s, 9' % S(sFr + pp))
        g.I('s_add_u32 s83, s83, s82')
        g.I('s_add_u32 s84, s83, %d' % (28 * 1024))
        for b in range(2):
            q = tq + 16 + 4 * ((2 * pp + b) & 3)
            rt = V(vRt + 2 * b, 2)
            for o in range(2):
                pos = 2 * pp + o
                a = acc2 + 8 * pos + 4 * b
                for k in range(2):
                    g.I('v_pk_mul_f32 %s, %s, %s op_sel:[0,1] op_sel_hi:[1,1]' % (V(tq + 4 * o + 2 * k, 2), V(vB + 4 * pos + 2 * k, 2), rt))
            for o in range(2):
                pos = 2 * pp + o
                a = acc2 + 8 * pos + 4 * b
                for k in range(2):
                    g.I('v_pk_fma_f32 %s, %s, %s, %s op_sel_hi:[1,0,1] neg_lo:[0,0,1] neg_hi:[0,0,1]' % (V(a + 2 * k, 2), V(a + 2 * k, 2), rt, V(tq + 4 * o + 2 * k, 2)))
            for o in range(2):
                a = acc2 + 8 * (2 * pp + o) + 4 * b
                for k in range(2):
                    g.I('v_cvt_pk_bf16_f32 %s, %s, %s' % (V(q + 2 * o + k), V(a + 2 * k), V(a + 2 * k + 1)))
            g.I('buffer_store_dwordx4 %s, %s, %s, %s offen sc1' % (V(q, 4), V(vL16), sWS, S(83 + b)), tok=tz1)
    flag_store(g, [tz1], ['s_xor_b32 s83, %s, 1' % S(sCg), 's_lshl_b32 s82, %s, 3' % S(sRb), 's_add_u32 s82, s82, s83', 's_lshl_b32 s82, s82, 7',
                          's_lshl_b32 s83, %s, 2' % S(sWave), 's_add_u32 s82, s82, s83', 's_add_u32 s82, s82, 0x%x' % WS_Z1F], 82)
    g.I('s_waitcnt lgkmcnt(0)')
    g.I('s_branch L_p2')
    return g


def p1q():
    g = Seg('p1q')
    P = Priv()
    acc, hal, vSM, vSS, vHS = 64, 160, 172, 180, 188
    vRdH = vTr + 4
    wtok = {}

    def accr(u, hp, b):
        return acc + 32 * u + 8 * hp + 4 * b

    def w_issue(s):
        t = wtok[s] = Tok('W%d' % s)
        out = [mk('s_add_u32 s82, %s, %d' % (S(sRho1), s & 7)),
               mk('s_and_b32 s82, s82, 7'),
               mk('s_mul_i32 s82, s82, %d' % (64 * 3072)),
               mk('s_mul_i32 s83, %s, 3072' % S(sWave))]
        for e in range(2):
            out.append(mk('s_add_u32 m0, s83, %d' % ((s % 3) * 24576 + e * 12288)))
            if e:
                out.append(mk('s_add_u32 s82, s82, %d' % (32 * 3072)))
            for u in range(3):
                out.append(mk('buffer_load_dwordx4 %s, %s, s82 offen offset:%d lds' % (V(vWa), sW, 1024 * u), tok=t))
        return out

    g.I('v_bfe_u32 v29, v0, 4, 1')
    g.I('s_and_b32 s82, %s, 1' % S(sWave))
    g.I('s_lshl_b32 s82, s82, 1')
    g.I('v_or_b32 v29, s82, v29')
    g.I('v_bfe_u32 v30, v0, 1, 2')
    g.I('v_xor_b32 v29, v29, v30')
    g.I('v_lshlrev_b32 v29, 5, v29')
    g.I('v_and_b32 v30, 1, v0')
    g.I('v_lshl_or_b32 v29, v30, 4, v29')
    g.I('v_lshrrev_b32 v30, 3, v0')
    g.I('s_lshl_b32 s82, %s, 3' % S(sWave))
    g.I('v_add_u32 v30, s82, v30')
    g.I('v_mul_u32_u24 v30, 3072, v30')
    g.I('s_lshl_b32 s82, %s, 7' % S(sCg))
    g.I('v_add3_u32 %s, v30, v29, s82' % V(vWa))
    g.extend(P.issue(0))
    g.extend(w_issue(0))
    th = Tok('halo')
    g.I('s_lshl_b32 s83, %s, 12' % S(sWave))
    g.I('s_add_u32 m0, s83, %d' % L_HALO)
    g.I('s_lshl_b32 s84, %s, 17' % S(sRb))
    g.I('s_sub_u32 s84, s84, 16384')
    for t2 in range(2):
        g.I('s_lshl_b32 s82, %s, 1' % S(sWave))
        g.I('s_add_u32 s82, s82, %s' % S(sRho1))
        g.I('s_add_u32 s82, s82, %d' % t2)
        g.I('s_and_b32 s82, s82, 7')
        g.I('s_lshl_b32 s82, s82, 7')
        g.I('s_add_u32 s82, s82, s84')
        if t2:
            g.I('s_sub_u32 s82, s82, 2048')
        for q in range(2):
            g.I('v_add_u32 %s, s82, %s' % (V(13 + q), V(vXa + q)))
            g.I('buffer_load_dwordx4 %s, %s, 0 offen offset:%d lds' % (V(13 + q), sX, 2048 * t2 + 1024 * q), tok=th)
    g.extend(P.issue(1))
    g.extend(w_issue(1))
    g.extend(P.issue(2))
    g.extend(w_issue(2))
    consts(g)
    g.I('v_lshrrev_b32 v30, 4, v0')
    g.I('v_mul_u32_u24 v31, 3072, v30')
    g.I('v_bfe_u32 v29, v0, 2, 2')
    g.I('v_lshl_add_u32 v31, v29, 7, v31')
    g.I('v_and_b32 v29, 3, v0')
    g.I('v_lshl_add_u32 v31, v29, 3, v31')
    g.I('v_bfe_u32 v29, v0, 3, 2')
    g.I('v_xor_b32 v29, %s, v29' % S(sWave))
    g.I('v_lshl_add_u32 %s, v29, 5, v31' % V(vTr))
    for hp in range(1, 4):
        g.I('v_xor_b32 %s, %d, %s' % (V(vTr + hp), hp << 5, V(vTr)))
    g.I('s_sub_u32 s82, %d, %s' % (L_HALO, S(sPriv)))
    g.I('v_add_u32 %s, s82, %s' % (V(vRdH), V(vRd0)))
    g.I('v_add_u32 %s, s82, %s' % (V(vRdH + 1), V(vRd1)))
    tag_publish(g)
    g.I('v_lshrrev_b32 v29, 3, v0')
    g.I('v_lshlrev_b32 v29, 11, v29')
    g.I('v_and_b32 v30, 7, v0')
    g.I('v_lshl_add_u32 v29, v30, 4, v29')
    g.I('s_lshl_b32 s83, %s, 12' % S(sWave))
    g.I('s_add_u32 s83, s83, %d' % L_HALO)
    g.I('v_add_u32 v29, s83, v29')
    tone = Tok('ones')
    g.wait(th)
    g.I('s_mov_b64 exec, 0xffff')
    g.I('ds_write_b128 v29, %s' % V(vOnes, 4), tok=tone)
    g.I('s_mov_b64 exec, -1')

    vH = [13 + 0, 0]
    hq = [V(192, 4), V(196, 4)]
    us = []
    for i in range(16):
        s, e = i >> 1, i & 1
        k = 0
        for hp in range(4):
            for u in range(3):
                off = (s % 3) * 24576 + e * 12288 + u * 1024
                rds = ['ds_read_b64_tr_b16 %%s, %s offset:%d' % (V(vTr + hp), off + 512 * h) for h in range(2)]
                ms = []
                for b in range(2):
                    d = V(accr(u, hp, b), 4)
                    c = d if i else '0'
                    ms.append(mfma(d, '%B', xreg(i, b), c) if u < 2 else mfma(d, xreg(i, b), '%B', c))
                if hp == 0:
                    d = V(hal + 4 * u, 4)
                    c = d if i else '0'
                    ms.append(mfma(d, '%B', hq[e], c) if u < 2 else mfma(d, hq[e], '%B', c))
                elif k in (3, 4):
                    b = k - 3
                    d = V(vSM + 4 * b, 4)
                    ms.append(mfma(d, xreg(i, b), V(vOnes, 4), d if i else '0'))
                elif k in (5, 6):
                    b = k - 5
                    d = V(vSS + 4 * b, 4)
                    ms.append(mfma(d, xreg(i, b), xreg(i, b), d if i else '0'))
                elif k == 7:
                    d = V(vHS, 4)
                    ms.append(mfma(d, hq[e], hq[e], d if i else '0'))
                elif k == 8 and i + 2 < 16 and False:
                    pass
                us.append((s, rds, ms))
                k += 1

    class LazyOpens(dict):
        def get(self, s, default=None):
            it = [mkwait(wtok[s], P.dma[s], *([tone] if s == 0 else [])), mk('s_barrier')]
            if s >= 2 and s + 1 < 8:
                it += w_issue(s + 1)
            if s >= 1:
                it += P.issue(s + 2)
            it += P.read(s)
            if s == 3:
                it.append(mk('buffer_load_dword %s, off, %s, 0 sc1' % (V(vTag), sDBG)))
            return it

    N = len(us)
    us2 = []
    for u in range(N):
        st, rds, ms = us[u]
        i, k = divmod(u, 12)
        ms = list(ms)
        if k == 8 and i + 2 < 16:
            ms.append('ds_read_b128 %s, %s offset:%d' % (hq[i & 1], V(vRdH + (i & 1)), 2048 * ((i + 2) >> 1)))
        us2.append((st, rds, ms))

    class LO(LazyOpens):
        def get(self, s, default=None):
            it = LazyOpens.get(self, s)
            if s == 0:
                for e in range(2):
                    it.append(mk('ds_read_b128 %s, %s' % (hq[e], V(vRdH + e))))
            return it

    stamp(g, 1)
    run_pass(g, us2, LO())
    stamp(g, 2)
    CS = L_MISC
    g.I('v_lshrrev_b32 v30, 4, v0')
    g.I('s_lshl_b32 s82, %s, 6' % S(sWave))
    g.I('s_add_u32 s82, s82, %d' % CS)
    g.I('v_lshl_add_u32 v13, v30, 4, s82')
    g.I('v_and_b32 v29, 15, v0')
    g.I('v_lshl_add_u32 v14, v29, 2, s82')
    tcs = Tok('cs')
    g.I('s_mov_b32 exec_lo, 0x00010001\ns_mov_b32 exec_hi, 0x00010001')
    g.I('ds_write_b128 v13, %s' % V(hal, 4), tok=tcs)
    g.I('ds_write_b128 v13, %s offset:256' % V(hal + 4, 4), tok=tcs)
    g.I('s_mov_b64 exec, 0xffff')
    g.I('ds_write_b32 v14, %s offset:512' % V(hal + 8), tok=tcs)
    g.I('s_mov_b64 exec, -1')
    vR, vRM = 192, 204
    g.I('v_mul_u32_u24 v31, 80, v30')
    g.I('v_lshlrev_b32 v30, 6, v30')
    for b in range(2):
        for r in range(4):
            g.I('ds_bpermute_b32 %s, v31, %s offset:%d' % (V(vR + 4 * b + r), V(vSS + 4 * b + r), 4 * r))
    for r in range(4):
        g.I('ds_bpermute_b32 %s, v31, %s offset:%d' % (V(vR + 8 + r), V(vHS + r), 4 * r))
    for r in range(4):
        g.I('ds_bpermute_b32 %s, v30, %s' % (V(vRM + 8 + r), V(vHS + r)))
    for i in range(8):
        g.I('v_mov_b32 %s, %s' % (V(vRM + i), V(vSM + i)))
    g.wait(tcs)
    g.I('s_barrier')
    vCq = vB
    vCv = 172
    for hp in range(4):
        if hp:
            g.I('v_xor_b32 v29, %d, v13' % (hp << 6))
            g.I('v_xor_b32 v15, %d, v14' % (hp << 6))
        for u in range(2):
            g.I('ds_read_b128 %s, %s offset:%d' % (V(vCq + 16 * u + 4 * hp, 4), 'v29' if hp else 'v13', 256 * u))
        g.I('ds_read_b32 %s, %s offset:512' % (V(vCv + hp), 'v15' if hp else 'v14'))
    row_stats(g, vRM, vR, 12)
    vRt = 176
    g.I('v_and_b32 v30, 15, v0')
    g.I('v_lshrrev_b32 v31, 2, v30')
    g.I('v_lshl_add_u32 v31, v31, 4, v30')
    g.I('v_lshlrev_b32 v31, 2, v31')
    for b in range(3):
        to_lane_layout(g, vR + 4 * b, vRt + 2 * b, 31, 182, 183)
        to_lane_layout(g, vRM + 4 * b, vRt + 2 * b + 1, 31, 184, 185)
    tag_check(g)
    g.I('v_mov_b32 %s, %s' % (V(vTag), S(sTag)))
    tm = 216
    main = []

    def fold_dp(a, cs4, b):
        rt = V(vRt + 2 * b, 2)
        for k in range(2):
            main.append('v_pk_mul_f32 %s, %s, %s op_sel:[0,1] op_sel_hi:[1,1]' % (V(tm + 2 * k, 2), V(cs4 + 2 * k, 2), rt))
        for k in range(2):
            main.append('v_pk_fma_f32 %s, %s, %s, %s op_sel_hi:[1,0,1] neg_lo:[0,0,1] neg_hi:[0,0,1]' % (V(a + 2 * k, 2), V(a + 2 * k, 2), rt, V(tm + 2 * k, 2)))

    def fold_d(a, hp, b):
        sel = 'op_sel_hi:[1,0]' if hp % 2 == 0 else 'op_sel:[0,1] op_sel_hi:[1,1]'
        for k in range(2):
            main.append('v_pk_mul_f32 %s, %s, %s %s' % (V(tm + 4 + 2 * k, 2), V(vRM + 4 * b + 2 * k, 2), V(vCv + (hp & ~1), 2), sel))
        for k in range(2):
            main.append('v_pk_fma_f32 %s, %s, %s, %s neg_lo:[0,0,1] neg_hi:[0,0,1]' % (V(a + 2 * k, 2), V(a + 2 * k, 2), V(vR + 4 * b + 2 * k, 2), V(tm + 4 + 2 * k, 2)))

    def pack(dst, a):
        for k in range(2):
            main.append('v_cvt_pk_bf16_f32 %s, %s, %s' % (V(dst + k), V(a + 2 * k), V(a + 2 * k + 1)))

    fold_dp(hal + 4, vCq + 16, 2)
    fold_d(hal + 8, 0, 2)
    pack(hal + 4, hal + 4)
    pack(hal + 8, hal + 8)
    for hp in range(4):
        for b in range(2):
            fold_dp(accr(1, hp, b), vCq + 16 + 4 * hp, b)
            fold_d(accr(2, hp, b), hp, b)
        for u in (1, 2):
            a = accr(u, hp, 0)
            main.append('v_cvt_pk_bf16_f32 %s, %s, %s' % (V(a + 3), V(a + 2), V(a + 3)))
            main.append('v_cvt_pk_bf16_f32 %s, %s, %s' % (V(a + 2), V(a), V(a + 1)))
            pack(a + 4, a + 4)
    g.extend(main)
    main = []
    g.I('s_lshl_b32 s82, %s, 12' % S(sWave))
    g.I('s_lshl_b32 s83, %s, 10' % S(sWave))
    g.I('s_add_u32 s82, s82, s83')
    g.I('v_lshlrev_b32 v29, 3, v0')
    g.I('v_add_u32 v13, s82, v29')
    g.I('v_add_u32 v14, s83, v29')
    tx = Tok('xch')
    g.I('ds_write_b64 v14, %s' % V(hal + 4, 2), tok=tx)
    g.I('ds_write_b64 v14, %s offset:512' % V(hal + 8, 2), tok=tx)
    for hp in range(4):
        if hp:
            g.I('v_xor_b32 %s, %d, v13' % (V(vTr + hp), hp << 10))
        ad = V(vTr + hp) if hp else 'v13'
        g.I('ds_write_b64 %s, %s offset:4096' % (ad, V(accr(1, hp, 0) + 4, 2)), tok=tx)
        g.I('ds_write_b64 %s, %s offset:4608' % (ad, V(accr(2, hp, 0) + 4, 2)), tok=tx)
    for hp in range(4):
        for b in range(2):
            fold_dp(accr(0, hp, b), vCq + 4 * hp, b)
        a = accr(0, hp, 0)
        pack(a, a)
        pack(a + 2, a + 4)
    g.extend(main)
    main = []
    vMb = 192
    g.I('v_and_b32 v29, 14, v0')
    g.I('v_bfe_u32 v30, v0, 4, 2')
    g.I('v_lshlrev_b32 v30, 2, v30')
    g.I('v_sub_u32 v29, v29, v30')
    g.I('v_mov_b32 v30, 0x%x' % f2u(-1e30))
    for k, (cmp_, c) in enumerate((('ge', -2), ('ge', 0), ('le', 0), ('le', 2))):
        g.I('v_cmp_%s_i32 vcc, %d, v29' % (cmp_, c))
        g.I('v_cndmask_b32 %s, v30, 0, vcc' % V(vMb + k))
    g.I('s_lshl_b32 s82, %s, 2' % S(sRb))
    g.I('s_or_b32 s82, s82, %s' % S(sWave))
    g.I('s_cmp_eq_u32 s82, 0')
    g.I('s_cselect_b64 vcc, -1, 0')
    g.I('v_cndmask_b32 %s, %s, v30, vcc' % (V(vMb + 4), V(vMb)))
    g.I('v_cndmask_b32 %s, %s, v30, vcc' % (V(vMb + 5), V(vMb + 1)))
    g.I('v_cndmask_b32 %s, 1.0, 0, %s' % (V(vMb + 6), S(sPar, 2)))
    g.I('v_cndmask_b32 %s, 0, 1.0, %s' % (V(vMb + 7), S(sPar, 2)))
    g.I('s_mov_b32 s84, 0x%x' % f2u(0.25 * math.log2(math.e)))
    g.I('s_mov_b32 s85, s84')
    g.wait(tx)
    g.I('s_barrier')
    for hp in range(4):
        ad = V(vTr + hp) if hp else 'v13'
        g.I('ds_read_b64 %s, %s' % (V(accr(1, hp, 0), 2), ad))
        g.I('ds_read_b64 %s, %s offset:512' % (V(accr(2, hp, 0), 2), ad))
    to = Tok('o')
    vO = 160
    for b in range(2):
        T = [vB + 8 * hp for hp in range(4)]
        U = [200 + 6 * hp for hp in range(4)]
        st = [[] for _ in range(20)]
        for hp in range(4):
            t, u_ = T[hp], U[hp]
            kq, q = accr(1, hp, 0), accr(0, hp, 0) + 2 * b
            st[0].append('v_mfma_f32_16x16x16_bf16 %s, %s, %s, 0' % (V(t, 4), V(kq + 2 * b, 2), V(q, 2)))
            st[0].append('v_mfma_f32_16x16x16_bf16 %s, %s, %s, 0' % (V(t + 4, 4), V(kq + 2 * b + 2, 2), V(q, 2)))
            for k in range(4):
                st[1].append('v_cndmask_b32 %s, %s, %s, %s' % (V(u_ + k), V(t + 2 * k), V(t + 2 * k + 1), S(sPar, 2)))
            m01 = V(vMb + 4, 2) if b == 0 else V(vMb, 2)
            st[2].append('v_pk_fma_f32 %s, %s, s[84:85], %s' % (V(u_, 2), V(u_, 2), m01))
            st[2].append('v_pk_fma_f32 %s, %s, s[84:85], %s' % (V(u_ + 2, 2), V(u_ + 2, 2), V(vMb + 2, 2)))
            st[3].append('v_max3_f32 %s, %s, %s, %s' % (V(u_ + 4), V(u_), V(u_ + 1), V(u_ + 2)))
            st[4].append('v_max_f32 %s, %s, %s' % (V(u_ + 4), V(u_ + 4), V(u_ + 3)))
            st[5].append('v_mov_b32 %s, %s' % (V(u_ + 5), V(u_ + 4)))
            st[6].append('v_permlane32_swap_b32 %s, %s' % (V(u_ + 4), V(u_ + 5)))
            st[7].append('v_max_f32 %s, %s, %s' % (V(u_ + 4), V(u_ + 4), V(u_ + 5)))
            st[7].append('v_mov_b32 %s, %s' % (V(u_ + 5), V(u_ + 4)))
            st[8].append('v_permlane16_swap_b32 %s, %s' % (V(u_ + 4), V(u_ + 5)))
            st[9].append('v_max_f32 %s, %s, %s' % (V(u_ + 4), V(u_ + 4), V(u_ + 5)))
            for k in range(2):
                st[10].append('v_pk_add_f32 %s, %s, %s op_sel_hi:[1,0] neg_lo:[0,1] neg_hi:[0,1]' % (V(u_ + 2 * k, 2), V(u_ + 2 * k, 2), V(u_ + 4, 2)))
            for k in range(4):
                st[11].append('v_exp_f32 %s, %s' % (V(u_ + k), V(u_ + k)))
            st[12].append('v_pk_add_f32 %s, %s, %s' % (V(u_ + 4, 2), V(u_, 2), V(u_ + 2, 2)))
            st[13].append('v_add_f32 %s, %s, %s' % (V(u_ + 4), V(u_ + 4), V(u_ + 5)))
            st[13].append('v_mov_b32 %s, %s' % (V(u_ + 5), V(u_ + 4)))
            st[14].append('v_permlane32_swap_b32 %s, %s' % (V(u_ + 4), V(u_ + 5)))
            st[15].append('v_add_f32 %s, %s, %s' % (V(u_ + 4), V(u_ + 4), V(u_ + 5)))
            st[15].append('v_mov_b32 %s, %s' % (V(u_ + 5), V(u_ + 4)))
            st[16].append('v_permlane16_swap_b32 %s, %s' % (V(u_ + 4), V(u_ + 5)))
            st[17].append('v_add_f32 %s, %s, %s' % (V(u_ + 4), V(u_ + 4), V(u_ + 5)))
            st[18].append('v_rcp_f32 %s, %s' % (V(u_ + 4), V(u_ + 4)))
            st[19].append('v_pk_mul_f32 %s, %s, %s op_sel_hi:[1,0]' % (V(u_ + 4, 2), V(vMb + 6, 2), V(u_ + 4, 2)))
        main = [x for s_ in st for x in s_]
        for hp in range(4):
            t, u_ = T[hp], U[hp]
            for k in range(4):
                sel = 'op_sel_hi:[1,0]' if k % 2 == 0 else 'op_sel:[0,1] op_sel_hi:[1,1]'
                main.append('v_pk_mul_f32 %s, %s, %s %s' % (V(t + 2 * k, 2), V(u_ + 4, 2), V(u_ + (k & ~1), 2), sel))
        for hp in range(4):
            t, u_ = T[hp], U[hp]
            for k in range(4):
                main.append('v_cvt_pk_bf16_f32 %s, %s, %s' % (V(u_ + k), V(t + 2 * k), V(t + 2 * k + 1)))
        for hp in range(4):
            main.append(mfma(V(T[hp], 4), V(accr(2, hp, 0) + 2 * b, 4), V(U[hp], 4), '0'))
        bg = []
        for n in (range(10, 14) if b == 0 else range(14, 16)):
            bg.append(P.read(n - 2))
            bg.append(P.issue(n))
        g.extend(interleave([mk(m) for m in main], bg, every=len(main) // (len(bg) + 1)))
        for hp in range(4):
            for k in range(2):
                g.I('v_cvt_pk_bf16_f32 %s, %s, %s' % (V(vO + 8 * b + 2 * hp + k), V(T[hp] + 2 * k), V(T[hp] + 2 * k + 1)))
    lsk = lab('L_osw')
    g.I('s_bitcmp1_b32 %s, 0' % S(sWave))
    g.I('s_cbranch_scc0 %s' % lsk)
    for b in range(2):
        for pr in range(2):
            for k in range(2):
                g.I('v_swap_b32 %s, %s' % (V(vO + 8 * b + 4 * pr + k), V(vO + 8 * b + 4 * pr + 2 + k)))
    g.label(lsk)
    g.I('s_lshl_b32 s82, %s, 3' % S(sRb))
    g.I('s_lshl_b32 s83, %s, 1' % S(sWave))
    g.I('s_add_u32 s82, s82, s83')
    g.I('s_lshl_b32 s82, s82, 4')
    g.I('s_lshl_b32 s83, %s, 1' % S(sCg))
    g.I('s_add_u32 s82, s82, s83')
    g.I('s_lshr_b32 s83, %s, 1' % S(sWave))
    g.I('s_add_u32 s82, s82, s83')
    g.I('s_lshl_b32 s82, s82, 10')
    g.I('s_add_u32 s82, s82, 0x%x' % WS_O)
    g.I('s_xor_b32 s83, s82, 1024')
    g.I('s_add_u32 s84, s82, 16384')
    g.I('s_add_u32 s85, s83, 16384')
    for b in range(2):
        for pr in range(2):
            g.I('buffer_store_dwordx4 %s, %s, %s, %s offen sc1' % (V(vO + 8 * b + 4 * pr, 4), V(vL16), sWS, S(82 + 2 * b + pr)), tok=to)
    for n in range(16, 24):
        g.extend(P.read(n - 2))
        g.extend(P.issue(n))
        if n == 17:
            flag_store(g, [to], ['s_lshl_b32 s83, %s, 3' % S(sRb), 's_add_u32 s83, s83, %s' % S(sCg), 's_lshl_b32 s83, s83, 7',
                                 's_lshl_b32 s84, %s, 2' % S(sWave), 's_add_u32 s83, s83, s84', 's_add_u32 s83, s83, 0x%x' % WS_OF], 83)
    g.extend(P.read(22))
    g.extend(P.read(23))
    g.I('s_waitcnt lgkmcnt(0)')
    return g


def p23():
    g = Seg('p23')
    g.label('L_p2')
    g.I('s_nop 7')
    stamp(g, 7)
    acc = 64
    vL16b = 4
    bufs = [V(32 + 4 * i, 4) for i in range(8)] + [A(192 + 4 * i, 4) for i in range(16)]
    NBUF = len(bufs)
    g.I('v_add_u32 %s, 4096, %s' % (V(vL16b), V(vL16)))
    g.I('s_lshl_b32 s82, %s, 2' % S(sJ))
    g.I('s_lshr_b32 s83, 0x76443200, s82')
    g.I('s_and_b32 s83, s83, 15')
    g.I('s_lshr_b32 s84, 0x77543310, s82')
    g.I('s_and_b32 s84, s84, 15')
    g.I('v_mov_b32 v5, s83')
    g.I('v_mov_b32 v6, s84')
    g.I('v_cndmask_b32 v5, v5, v6, %s' % S(sPar, 2))
    g.I('v_lshlrev_b32 v5, 7, v5')
    g.I('v_bfe_u32 v6, v0, 1, 2')
    g.I('v_lshl_add_u32 v6, v6, 10, v5')
    g.I('s_lshl_b32 s82, %s, 12' % S(sWave))
    g.I('s_add_u32 s82, s82, 0x%x' % WS_ZF)
    ld = ['buffer_load_dwordx4 v[8:11], v6, %s, s82 offen sc1' % sWS]
    g.I(ld[0])
    g.I('s_lshl_b32 s83, %s, 2' % S(sTb))
    g.I('s_add_u32 s83, s83, %s' % S(sWave))
    g.I('s_lshl_b32 s84, s83, 5')
    g.I('v_and_b32 v7, 15, v0')
    g.I('v_lshlrev_b32 v7, 1, v7')
    g.I('buffer_load_ushort v12, v7, %s, s84 offen' % sB)
    poll(g, ld, [8, 9, 10, 11])
    stamp(g, 8)
    g.I('s_mul_i32 s85, %s, %d' % (S(sWave), 16 * 56))
    g.I('s_mul_i32 s84, %s, 7' % S(sJ))
    g.I('s_add_u32 s85, s85, s84')
    g.I('s_lshl_b32 s85, s85, 10')
    g.I('s_add_u32 s85, s85, 0x%x' % WS_Z2N)

    def bload(u):
        i, c = divmod(u, 7)
        out = []
        if c == 0:
            if i & 1 == 0:
                out += ['s_add_u32 s82, %s, %d' % (S(sRho2), i >> 1), 's_and_b32 s82, s82, 7',
                        's_mul_i32 s82, s82, %d' % (2 * 56 * 1024), 's_add_u32 s82, s82, s85']
            else:
                out += ['s_add_u32 s82, s82, %d' % (56 * 1024)]
        out.append('buffer_load_dwordx4 %s, %s, %s, s82 offen offset:%d sc1' % (bufs[u % NBUF], V(vL16 if c < 4 else vL16b), sWS, 1024 * (c & 3)))
        return out

    LA = 16
    for u in range(LA):
        g.I('\n'.join(bload(u)))
    vZ = 176
    vZf = 192
    side = {}

    def at(u, items):
        side.setdefault(u, []).extend(items)

    z1ld = ['s_lshr_b32 s83, %s, 1' % S(sTb), 's_lshl_b32 s83, s83, 10', 's_add_u32 s83, s83, 0x%x' % WS_Z1F,
            'buffer_load_dwordx4 v[8:11], v5, %s, s83 offen sc1' % sWS]
    at(35, z1ld)
    at(49, [('poll', z1ld, [8, 9, 10, 11])])
    it = ['s_lshl_b32 s83, %s, 2' % S(sTb), 's_add_u32 s83, s83, %s' % S(sWave), 's_mul_i32 s83, s83, %d' % (28 * 1024),
          's_add_u32 s83, s83, 0x%x' % WS_Z1R, 's_mul_i32 s97, %s, 7' % S(sJ)]
    for c in range(7):
        it += ['s_add_u32 s84, s97, %d' % c, 's_and_b32 s96, s84, 1', 's_lshl_b32 s96, s96, 3', 's_lshr_b32 s84, s84, 1',
               's_lshl_b32 s84, s84, 10', 's_add_u32 s84, s84, s96', 's_add_u32 s84, s84, s83',
               'buffer_load_dwordx2 %s, %s, %s, s84 offen sc1' % (V(vZ + 2 * c, 2), V(vL16), sWS)]
    at(50, it)
    gl = []
    for c2 in range(14):
        y0, y1, t0, t1 = vZf + 2 * c2, vZf + 2 * c2 + 1, 13 + 2 * (c2 & 1), 14 + 2 * (c2 & 1)
        gl += ['v_lshlrev_b32 %s, 16, %s' % (V(y0), V(vZ + c2)), 'v_and_b32 %s, 0xffff0000, %s' % (V(y1), V(vZ + c2))]
        for y, t in ((y0, t0), (y1, t1)):
            gl.append('v_mul_f32 %s, %s, %s' % (V(t), V(y), V(y)))
        for y, t in ((y0, t0), (y1, t1)):
            gl.append('v_fma_f32 %s, %s, %s, v17' % (V(t), V(t), S(sGE)))
        for y, t in ((y0, t0), (y1, t1)):
            gl.append('v_mul_f32 %s, %s, %s' % (V(t), V(t), V(y)))
        for y, t in ((y0, t0), (y1, t1)):
            gl.append('v_exp_f32 %s, %s' % (V(t), V(t)))
        for y, t in ((y0, t0), (y1, t1)):
            gl.append('v_add_f32 %s, 1.0, %s' % (V(t), V(t)))
        for y, t in ((y0, t0), (y1, t1)):
            gl.append('v_rcp_f32 %s, %s' % (V(t), V(t)))
        gl.append('s_nop 0')
        for y, t in ((y0, t0), (y1, t1)):
            gl.append('v_mul_f32 %s, %s, %s' % (V(y), V(y), V(t)))
    at(69, ['v_mov_b32 v17, %s' % S(sGE + 1)])
    per = 6
    for k in range(0, len(gl), per):
        at(70 + k // per, gl[k:k + per])
    assert 70 + len(gl) // per < 111

    vWd, vWt = 18, 22
    pre = ['v_lshrrev_b32 v13, 3, v0', 'v_bfe_u32 v14, v0, 1, 2', 'v_lshrrev_b32 v15, 4, v0', 'v_xor_b32 v14, v14, v15',
           'v_lshlrev_b32 v14, 5, v14', 'v_and_b32 v15, 1, v0', 'v_lshl_or_b32 v14, v15, 4, v14',
           'v_lshl_add_u32 %s, v13, 10, v14' % V(vWd)]
    for q in range(1, 4):
        pre.append('v_add_u32 %s, %d, %s' % (V(vWd + q), 7168 * q, V(vWd)))
    pre += ['v_lshrrev_b32 v13, 2, v0', 'v_lshlrev_b32 v14, 7, v13',
            'v_and_b32 v15, 3, v0', 'v_lshl_add_u32 v14, v15, 3, v14', 'v_bfe_u32 v13, v0, 3, 2',
            'v_lshl_add_u32 v14, v13, 5, v14', 'v_add_u32 %s, %s, v14' % (V(vWt), S(sPriv))]
    for c in range(1, 4):
        pre.append('v_xor_b32 %s, %d, %s' % (V(vWt + c), c << 5, V(vWt)))
    pre += ['s_lshl_b32 s83, %s, 1' % S(sJl), 's_add_u32 s83, s83, %s' % S(sTbl), 's_cmp_ge_u32 s83, 7', 's_cselect_b32 s84, 7, 0',
            's_sub_u32 %s, s83, s84' % S(sRho3), 's_add_u32 %s, %s, %s' % (S(sJl), S(sJl), S(sTbl)),
            's_and_b32 %s, %s, 3' % (S(sJl), S(sJl))]
    at(60, pre)
    wd, wr = {}, {}

    def kidx(k, dst):
        if k < 4:
            return ['s_add_u32 %s, %s, %d' % (dst, S(sJl), k), 's_and_b32 %s, %s, 3' % (dst, dst),
                    's_lshl_b32 s97, %s, 2' % S(sWave), 's_add_u32 %s, %s, s97' % (dst, dst)]
        return ['s_add_u32 %s, %s, %d' % (dst, S(sRho3), k - 4), 's_cmp_ge_u32 %s, 7' % dst, 's_cselect_b32 s97, 7, 0',
                's_sub_u32 %s, %s, s97' % (dst, dst), 's_mul_i32 s97, %s, 7' % S(sWave), 's_add_u32 %s, %s, s97' % (dst, dst)]

    def w3_issue(k):
        out = []
        if k - 4 in wr:
            out.append(mkwait(wr[k - 4]))
        t = wd[k] = Tok('w3_%d' % k)
        out += [mk(x) for x in kidx(k, 's83')]
        out += [mk('s_lshl_b32 s83, s83, 15'), mk('s_lshl_b32 s84, %s, 7' % S(sJ)), mk('s_add_u32 s83, s83, s84'),
                mk('s_add_u32 m0, %s, %d' % (S(sPriv), (k & 3) * 4096))]
        for q in range(4):
            out.append(mk('buffer_load_dwordx4 %s, %s, s83 offen offset:%d lds' % (V(vWd + q), sWO if k < 4 else sWOUT, 1024 * q), tok=t))
        return out

    def w3_read(k):
        out = [mkwait(wd[k])]
        t = wr[k] = Tok('w3r_%d' % k)
        for c in range(4):
            for h in range(2):
                out.append(mk('ds_read_b64_tr_b16 %s, %s offset:%d' % (A(16 * k + 4 * c + 2 * h, 2), V(vWt + c), (k & 3) * 4096 + 2048 * h), tok=t))
        return out

    for k in range(4):
        at(100 + 3 * k, [('lazy', w3_issue, k)])

    for u in range(112):
        i, c = divmod(u, 7)
        for bb in range(4):
            d = V(acc + 16 * c + 4 * bb, 4)
            g.I(mfma(d, bufs[u % NBUF], sreg(i, bb), d if i else '0'))
        if u + LA < 112:
            g.I('\n'.join(bload(u + LA)))
        for x in side.get(u, []):
            if isinstance(x, tuple) and x[0] == 'poll':
                poll(g, x[1], x[2])
            elif isinstance(x, tuple) and x[0] == 'lazy':
                g.extend(x[1](x[2]))
            else:
                g.I(x)
    stamp(g, 9)
    tr = Tok('red')
    for bb in range(1, 4):
        g.I('s_add_u32 s82, %s, %d' % (S(sWave), bb))
        g.I('s_and_b32 s82, s82, 3')
        g.I('s_mul_i32 s82, s82, 21504')
        g.I('s_add_u32 s82, s82, %d' % ((bb - 1) * 7168))
        g.I('v_add_u32 %s, s82, %s' % (V(12 + bb), V(vL16)))
        for c in range(7):
            g.I('ds_write_b128 %s, %s offset:%d' % (V(12 + bb), V(acc + 16 * c + 4 * bb, 4), 1024 * c), tok=tr)
    g.I('v_and_b32 v6, 1, v0')
    g.I('v_lshlrev_b32 v6, 7, v6')
    old = ['s_lshr_b32 s83, %s, 1' % S(sTb), 's_lshl_b32 s83, s83, 2', 's_add_u32 s83, s83, %s' % S(sWave), 's_lshl_b32 s83, s83, 8',
           's_add_u32 s83, s83, 0x%x' % WS_OF, 'buffer_load_dwordx4 v[8:11], v6, %s, s83 offen sc1' % sWS]
    g.I('\n'.join(old))
    g.I('s_mul_i32 s82, %s, 21504' % S(sWave))
    g.I('v_add_u32 v13, s82, %s' % V(vL16))
    g.I('v_lshlrev_b32 v12, 16, v12')
    g.wait(tr)
    g.I('s_barrier')
    for bb in range(1, 4):
        for c in range(7):
            g.I('ds_read_b128 %s, v13 offset:%d' % (V(acc + 16 * c + 4 * bb, 4), (bb - 1) * 7168 + 1024 * c))
    th = Tok('h')
    vH = 176
    for c in range(7):
        a = acc + 16 * c
        for k in range(2):
            g.I('v_pk_add_f32 %s, %s, %s' % (V(a + 2 * k, 2), V(a + 2 * k, 2), V(a + 4 + 2 * k, 2)))
            g.I('v_pk_add_f32 %s, %s, %s' % (V(a + 8 + 2 * k, 2), V(a + 8 + 2 * k, 2), V(a + 12 + 2 * k, 2)))
        for k in range(2):
            g.I('v_pk_add_f32 %s, %s, %s op_sel_hi:[1,0]' % (V(a + 2 * k, 2), V(a + 2 * k, 2), V(12, 2)))
        for k in range(2):
            g.I('v_pk_add_f32 %s, %s, %s' % (V(a + 2 * k, 2), V(a + 2 * k, 2), V(a + 8 + 2 * k, 2)))
        for k in range(2):
            g.I('v_pk_mul_f32 %s, %s, %s' % (V(a + 2 * k, 2), V(a + 2 * k, 2), V(vZf + 4 * c + 2 * k, 2)))
        for k in range(2):
            g.I('v_cvt_pk_bf16_f32 %s, %s, %s' % (V(vH + 2 * c + k), V(a + 2 * k), V(a + 2 * k + 1)))
    g.I('s_lshl_b32 s82, %s, 2' % S(sTb))
    g.I('s_add_u32 s82, s82, %s' % S(sWave))
    g.I('s_mul_i32 s82, s82, 28')
    g.I('s_mul_i32 s83, %s, 7' % S(sJ))
    g.I('s_lshr_b32 s83, s83, 1')
    g.I('s_add_u32 s82, s82, s83')
    g.I('s_lshl_b32 s82, s82, 10')
    g.I('s_add_u32 s82, s82, 0x%x' % WS_H)
    lo, le = lab('L_hodd'), lab('L_hend')
    g.I('s_bitcmp1_b32 %s, 0' % S(sJ))
    g.I('s_nop 1')
    g.I('s_cbranch_scc1 %s' % lo)
    for k in range(3):
        g.I('buffer_store_dwordx4 %s, %s, %s, s82 offen offset:%d sc1' % (V(vH + 4 * k, 4), V(vL16), sWS, 1024 * k), tok=th)
    g.I('buffer_store_dwordx2 %s, %s, %s, s82 offen offset:3072 sc1' % (V(vH + 12, 2), V(vL16), sWS), tok=th)
    g.I('s_branch %s' % le)
    g.label(lo)
    g.I('buffer_store_dwordx2 %s, %s, %s, s82 offen offset:8 sc1' % (V(vH, 2), V(vL16), sWS), shadow=True)
    for k in range(3):
        g.I('buffer_store_dwordx4 %s, %s, %s, s82 offen offset:%d sc1' % (V(vH + 2 + 4 * k, 4), V(vL16), sWS, 1024 * (k + 1)), shadow=True)
    g.label(le)
    g.I('s_barrier')
    poll(g, old, [8, 9, 10, 11])
    acc3 = 64
    vOf = 128
    hbuf = [V(192 + 4 * i, 4) for i in range(16)] + [A(176 + 4 * i, 4) for i in range(12)]
    flag_store(g, [th], ['s_lshl_b32 s82, %s, 3' % S(sTb), 's_add_u32 s82, s82, %s' % S(sJ), 's_lshl_b32 s82, s82, 7',
                         's_lshl_b32 s83, %s, 2' % S(sWave), 's_add_u32 s82, s82, s83', 's_add_u32 s82, s82, 0x%x' % WS_HF], 82)
    stamp(g, 10)
    for bb in range(4):
        g.I('s_add_u32 s82, %s, %d' % (S(sWave), bb))
        g.I('s_and_b32 s82, s82, 3')
        g.I('s_lshl_b32 s83, %s, 2' % S(sTb))
        g.I('s_add_u32 %s, s82, s83' % S(sFr + bb))
    for k in range(4):
        g.I('\n'.join(kidx(k, 's82')))
        for bb in range(4):
            g.I('s_lshl_b32 s83, %s, 4' % S(sFr + bb))
            g.I('s_add_u32 s83, s83, s82')
            g.I('s_lshl_b32 s83, s83, 10')
            g.I('s_add_u32 s83, s83, 0x%x' % WS_O)
            g.I('buffer_load_dwordx4 %s, %s, %s, s83 offen sc1' % (V(vOf + 16 * k + 4 * bb, 4), V(vL16), sWS))
        g.extend(w3_read(k))
        g.extend(w3_issue(k + 4))
    g.I('v_and_b32 v13, 15, v0')
    g.I('v_lshlrev_b32 v13, 10, v13')
    g.I('v_bfe_u32 v14, v0, 4, 1')
    g.I('v_lshl_add_u32 v13, v14, 5, v13')
    g.I('v_bfe_u32 v14, v0, 5, 1')
    g.I('v_lshl_add_u32 v13, v14, 4, v13')
    g.I('s_lshl_b32 s85, %s, 14' % S(sFr))
    g.I('s_lshl_b32 s83, %s, 7' % S(sJ))
    g.I('s_add_u32 s85, s85, s83')
    g.I('buffer_load_dwordx4 v[32:35], v13, %s, s85 offen' % sX)
    g.I('buffer_load_dwordx4 v[36:39], v13, %s, s85 offen offset:64' % sX)
    for k in range(4):
        for c in range(4):
            for bb in range(4):
                d = V(acc3 + 16 * c + 4 * bb, 4)
                g.I(mfma(d, A(16 * k + 4 * c, 4), V(vOf + 16 * k + 4 * bb, 4), d if k else '0'))
        g.extend(w3_read(k + 4))
        if k + 8 < 11:
            g.extend(w3_issue(k + 8))
    hld = ['s_lshl_b32 s83, %s, 2' % S(sTb), 's_add_u32 s83, s83, %s' % S(sWave), 's_lshl_b32 s83, s83, 8',
           's_add_u32 s83, s83, 0x%x' % WS_HF, 'buffer_load_dwordx4 v[8:11], v6, %s, s83 offen sc1' % sWS]
    g.I('\n'.join(hld))
    for k in range(8, 11):
        g.extend(w3_read(k))
    poll(g, hld, [8, 9, 10, 11])
    stamp(g, 11)
    for k in range(4, 11):
        g.I('\n'.join(kidx(k, 's82')))
        for bb in range(4):
            g.I('s_mul_i32 s83, %s, 28' % S(sFr + bb))
            g.I('s_add_u32 s83, s83, s82')
            g.I('s_lshl_b32 s83, s83, 10')
            g.I('s_add_u32 s83, s83, 0x%x' % WS_H)
            g.I('buffer_load_dwordx4 %s, %s, %s, s83 offen sc1' % (hbuf[4 * (k - 4) + bb], V(vL16), sWS))
    for k in range(4, 11):
        for bb in range(4):
            for c in range(4):
                d = V(acc3 + 16 * c + 4 * bb, 4)
                g.I(mfma(d, A(16 * k + 4 * c, 4), hbuf[4 * (k - 4) + bb], d))
    stamp(g, 12)
    tr3 = Tok('red3')
    for bb in range(1, 4):
        g.I('s_add_u32 s82, %s, %d' % (S(sWave), bb))
        g.I('s_and_b32 s82, s82, 3')
        g.I('s_mul_i32 s82, s82, 12288')
        g.I('s_add_u32 s82, s82, %d' % ((bb - 1) * 4096))
        g.I('v_add_u32 %s, s82, %s' % (V(13 + bb), V(vL16)))
        for c in range(4):
            g.I('ds_write_b128 %s, %s offset:%d' % (V(13 + bb), V(acc3 + 16 * c + 4 * bb, 4), 1024 * c), tok=tr3)
    g.I('s_mul_i32 s82, %s, 12288' % S(sWave))
    g.I('v_add_u32 v17, s82, %s' % V(vL16))
    g.wait(tr3)
    g.I('s_barrier')
    for bb in range(1, 4):
        for c in range(4):
            g.I('ds_read_b128 %s, v17 offset:%d' % (V(acc3 + 16 * c + 4 * bb, 4), (bb - 1) * 4096 + 1024 * c))
    for c in range(4):
        a = acc3 + 16 * c
        for k in range(2):
            g.I('v_pk_add_f32 %s, %s, %s' % (V(a + 2 * k, 2), V(a + 2 * k, 2), V(a + 4 + 2 * k, 2)))
            g.I('v_pk_add_f32 %s, %s, %s' % (V(a + 8 + 2 * k, 2), V(a + 8 + 2 * k, 2), V(a + 12 + 2 * k, 2)))
        for k in range(2):
            g.I('v_pk_add_f32 %s, %s, %s' % (V(a + 2 * k, 2), V(a + 2 * k, 2), V(a + 8 + 2 * k, 2)))
    for pr in range(2):
        a0, a1 = acc3 + 32 * pr, acc3 + 32 * pr + 16
        for r in range(4):
            g.I('v_permlane16_swap_b32 %s, %s' % (V(a0 + r), V(a1 + r)))
        x = 32 + 4 * pr
        for k in range(4):
            src = (a0 if k < 2 else a1) + 2 * (k & 1)
            g.I('v_lshlrev_b32 v40, 16, %s' % V(x + k))
            g.I('v_and_b32 v41, 0xffff0000, %s' % V(x + k))
            g.I('v_pk_add_f32 %s, %s, v[40:41]' % (V(src, 2), V(src, 2)))
            g.I('v_cvt_pk_bf16_f32 %s, %s, %s' % (V(44 + 4 * pr + k), V(src), V(src + 1)))
        g.I('buffer_store_dwordx4 %s, v13, %s, s85 offen offset:%d' % (V(44 + 4 * pr, 4), sOUT, 64 * pr))
    if STAMP:
        stamp(g, 13)
        g.I('s_waitcnt lgkmcnt(0)')
        g.I('s_lshl_b32 s82, s2, 2')
        g.I('s_add_u32 s82, s82, %s' % S(sWave))
        g.I('s_lshl_b32 s82, s82, 6')
        g.I('s_add_u32 s82, s82, 0x%x' % WS_DBG)
        for i in range(14):
            g.I('v_mov_b32 %s, %s' % (V(64 + i), S(sSt + i)))
        g.I('v_mov_b32 v78, 0\nv_mov_b32 v79, 0')
        g.I('s_mov_b64 exec, 1')
        for i in range(4):
            g.I('buffer_store_dwordx4 %s, off, %s, s82 offset:%d' % (V(64 + 4 * i, 4), sWS, 16 * i))
    g.label('L_end')
    g.I('s_endpgm')
    return g


def main():
    out = []
    hdr = open('parallel_sum__sliding_local_dilated__mixer_gmlp__prompt.s.ref').read().split('\n')
    for l in hdr:
        if l.startswith('; @launch'):
            break
        out.append(l)
    out.append('; @launch grid=(256,1,1) block=(256,1,1) lds=%d' % LDS_BYTES)
    out.append('.amdgcn_target "amdgcn-amd-amdhsa--gfx950"\n.text\n.globl %s\n.p2align 8\n.type %s,@function\n%s:' % (KN, KN, KN))
    stats = {}
    pro = prologue()
    lines, st0 = finish(pro, None, stats)
    out += lines
    sel = Seg('sel')
    sel.I('s_lshr_b32 s82, %s, 1' % S(sCg))
    sel.I('s_xor_b32 s82, s82, %s' % S(sCg))
    sel.I('s_bitcmp1_b32 s82, 0')
    sel.I('s_cbranch_scc1 L_p1z6')
    lines, st1 = finish(sel, st0, stats)
    out += lines
    for n1, l in ((8, None), (6, 'L_p1z6')):
        if l:
            out.append(l + ':')
        lines, st = finish(p1z(n1), st1, stats)
        assert not [o for o in st.vm if o.kind == 'vld'], 'loads pending at join'
        out += lines
    out.append('L_p1q:')
    lines, st = finish(p1q(), st0, stats)
    assert not [o for o in st.vm if o.kind == 'vld']
    out += lines
    lines, st = finish(p23(), None, stats)
    out += lines
    out += tail_code
    out.append(""".section .rodata,"a"
.p2align 6
.amdhsa_kernel %s
  .amdhsa_next_free_vgpr 512
  .amdhsa_next_free_sgpr 102
  .amdhsa_accum_offset 256
  .amdhsa_group_segment_fixed_size 0
  .amdhsa_kernarg_size 88
  .amdhsa_user_sgpr_count 2
  .amdhsa_user_sgpr_kernarg_segment_ptr 1
  .amdhsa_system_sgpr_workgroup_id_x 1
.end_amdhsa_kernel""" % KN)
    fn = [a for a in sys.argv[1:] if not a.startswith('--')][0]
    open(fn, 'w').write('\n'.join(out) + '\n')
    print('stats', stats, 'lines', len(out), file=sys.stderr)


main()
```

```python
import re

REG_RE = re.compile(r'^(-?)(\|?)([vas])(?:\[(\d+):(\d+)\]|(\d+))\|?$')


def regs_of(tok):
    tok = tok.strip()
    if tok == 'vcc':
        return [('s', 106), ('s', 107)]
    if tok == 'exec':
        return [('s', 126), ('s', 127)]
    if tok == 'm0':
        return [('s', 124)]
    if tok in ('vcc_lo',):
        return [('s', 106)]
    m = REG_RE.match(tok)
    if not m:
        return []
    k = m.group(3)
    if m.group(4) is not None:
        return [(k, i) for i in range(int(m.group(4)), int(m.group(5)) + 1)]
    return [(k, int(m.group(6)))]


TRANS = ('v_exp_f32', 'v_log_f32', 'v_rcp_f32', 'v_rsq_f32', 'v_sqrt_f32', 'v_sin_f32', 'v_cos_f32')


class Ins:
    __slots__ = ('text', 'mn', 'ops', 'kind', 'wr', 'rd', 'tok', 'waits', 'shadow', 'mod', 'srcC', 'srcAB',
                 'data', 'wide', 'raw')

    def __init__(self, text, tok=None, waits=None, shadow=False, raw=False):
        self.text = text
        self.tok = tok
        self.waits = waits or []
        self.shadow = shadow
        self.raw = raw
        self.wr, self.rd = [], []
        self.srcC, self.srcAB, self.data = [], [], []
        self.wide = False
        t = text.split(';')[0].strip()
        if raw or not t or t.endswith(':') or t.startswith('.'):
            self.kind = 'label' if t.endswith(':') else 'none'
            self.mn = ''
            self.ops = []
            self.mod = ''
            return
        parts = t.split(None, 1)
        self.mn = parts[0]
        rest = parts[1] if len(parts) > 1 else ''
        ops = [o.strip() for o in rest.split(',')] if rest else []
        joined = rest
        m = re.search(r'\s(offen|offset|op_sel|neg_lo|neg_hi|row_|quad_perm|bank_mask|sc0|sc1|nt|lds|clamp|bound_ctrl|glc)', ' ' + joined)
        if m:
            cut = m.start()
            self.mod = joined[cut:] if cut > 0 else joined
            joined = joined[:max(cut - 0, 0)]
            ops = [o.strip() for o in joined.split(',') if o.strip()]
        else:
            self.mod = ''
        self.ops = ops
        mn = self.mn
        R = regs_of
        if mn.startswith('v_mfma'):
            self.kind = 'mfma'
            self.wr = R(ops[0])
            self.srcAB = R(ops[1]) + R(ops[2])
            self.srcC = R(ops[3])
            self.rd = self.srcAB + self.srcC
        elif mn.startswith('v_cmp'):
            self.kind = 'valu'
            self.wr = R(ops[0])
            for o in ops[1:]:
                self.rd += R(o)
        elif mn.startswith('v_readfirstlane') or mn.startswith('v_readlane'):
            self.kind = 'valu'
            self.wr = R(ops[0])
            for o in ops[1:]:
                self.rd += R(o)
        elif mn.startswith('v_permlane') or mn.startswith('v_swap'):
            self.kind = 'valu'
            self.wr = R(ops[0]) + R(ops[1])
            self.rd = list(self.wr)
        elif mn.startswith('v_'):
            self.kind = 'valu'
            self.wr = R(ops[0])
            for o in ops[1:]:
                self.rd += R(o)
            if mn.startswith('v_fmac') or mn.startswith('v_dot2c') or '_dpp' in mn or mn.startswith('v_writelane'):
                self.rd += self.wr
            if mn.startswith('v_cndmask') and len(ops) == 3:
                self.rd += R('vcc')
            if mn.startswith('v_add_co') or mn.startswith('v_addc_co'):
                self.wr += R(ops[1])
        elif mn.startswith('ds_read') or mn.startswith('ds_bpermute') or mn.startswith('ds_swizzle'):
            self.kind = 'ldsr'
            self.wr = R(ops[0])
            for o in ops[1:]:
                self.rd += R(o)
        elif mn.startswith('ds_write') or mn.startswith('ds_add'):
            self.kind = 'ldsw'
            for o in ops:
                self.rd += R(o)
        elif mn.startswith('buffer_load') or mn.startswith('global_load'):
            if ' lds' in ' ' + self.mod:
                self.kind = 'dma'
                for o in ops:
                    self.rd += R(o)
                self.rd += R('m0')
            else:
                self.kind = 'vld'
                self.wr = [] if 'touch' in text else R(ops[0])
                for o in ops[1:]:
                    self.rd += R(o)
                if 'd16' in mn:
                    self.rd += self.wr
        elif mn.startswith('buffer_store') or mn.startswith('global_store') or mn.startswith('buffer_atomic'):
            self.kind = 'vst'
            for o in ops:
                self.rd += R(o)
            self.data = R(ops[0]) if mn.startswith('buffer') else R(ops[1])
            self.wide = mn.endswith('x4') or mn.endswith('x3')
        elif mn.startswith('s_load') or mn.startswith('s_buffer_load') or mn.startswith('s_memtime') or mn.startswith('s_memrealtime'):
            self.kind = 'smem'
            self.wr = R(ops[0])
            for o in ops[1:]:
                self.rd += R(o)
        elif mn == 's_waitcnt':
            self.kind = 'wait'
        elif mn == 's_nop':
            self.kind = 'nop'
        elif mn.startswith('s_cbranch') or mn == 's_branch':
            self.kind = 'branch'
            if 'vcc' in mn:
                self.rd = R('vcc')
        elif mn.startswith('s_cmp') or mn.startswith('s_bitcmp'):
            self.kind = 'salu'
            for o in ops:
                self.rd += R(o)
        elif mn in ('s_barrier', 's_endpgm', 's_sleep', 's_setprio'):
            self.kind = 'misc'
        elif mn.startswith('s_'):
            self.kind = 'salu'
            self.wr = R(ops[0])
            for o in ops[1:]:
                self.rd += R(o)
            if 'saveexec' in mn:
                self.wr += R('exec')
        else:
            raise ValueError('unknown instruction: ' + text)


class Tok:
    __slots__ = ('name',)

    def __init__(self, name=''):
        self.name = name


class Seg:
    def __init__(self, name):
        self.name = name
        self.ins = []

    def I(self, text, tok=None, waits=None, shadow=False):
        for line in text.split('\n'):
            line = line.strip()
            if not line:
                continue
            self.ins.append(Ins(line, tok=tok, waits=waits, shadow=shadow))
            waits = None
        return tok

    def raw(self, text):
        self.ins.append(Ins(text, raw=True))

    def label(self, name):
        self.ins.append(Ins(name + ':'))

    def wait(self, *toks):
        self.ins.append(Ins('', waits=list(toks)))

    def extend(self, items):
        for it in items:
            if isinstance(it, Ins):
                self.ins.append(it)
            elif isinstance(it, str):
                self.I(it)
            else:
                self.extend(it)


def mk(text, tok=None, waits=None):
    if isinstance(text, (list, tuple)):
        return [mk(t) for t in text]
    if isinstance(text, Ins):
        return text
    return Ins(text, tok=tok, waits=waits)


def mkwait(*toks):
    return Ins('', waits=list(toks))


class State:
    def __init__(self):
        self.vm = []
        self.lg = []
        self.sm = []
        self.hist = []

    def copy(self):
        s = State()
        s.vm, s.lg, s.sm, s.hist = list(self.vm), list(self.lg), list(self.sm), list(self.hist)
        return s


def _ov(a, b):
    if not a or not b:
        return False
    sb = set(b)
    return any(x in sb for x in a)


def _isv(r):
    return r[0] in 'va'


def need_states(prev, cur):
    n = 0
    pk, ck = prev.kind, cur.kind
    pv = [r for r in prev.wr if _isv(r)]
    ps = [r for r in prev.wr if r[0] == 's']
    if pk == 'valu':
        if ck == 'mfma' and _ov(pv, cur.rd):
            n = max(n, 2)
        if ck == 'valu':
            if prev.mn.replace('_e32', '').replace('_e64', '') in TRANS and _ov(pv, cur.rd):
                n = max(n, 1)
            if '_dpp' in cur.mn and _ov(pv, cur.rd):
                n = max(n, 2)
            if cur.mn.startswith('v_permlane') and _ov(pv, cur.rd):
                n = max(n, 2)
            if (cur.mn.startswith('v_readlane') or cur.mn.startswith('v_readfirstlane')) and _ov(pv, cur.rd):
                n = max(n, 1)
            if _ov(ps, cur.rd):
                n = max(n, 4 if cur.mn.startswith('v_readlane') or cur.mn.startswith('v_writelane') else 2)
        if ck in ('vld', 'vst', 'dma') and _ov(ps, cur.rd):
            n = max(n, 5)
        if ck in ('salu', 'branch', 'smem') and _ov(ps, cur.rd):
            n = max(n, 2)
    if pk == 'mfma':
        if ck == 'mfma':
            if _ov(prev.wr, cur.srcAB):
                n = max(n, 8)
            if _ov(prev.wr, cur.srcC) and prev.wr != cur.srcC:
                n = max(n, 6)
            if _ov(prev.wr, cur.wr) and prev.wr != cur.srcC:
                n = max(n, 8)
        elif ck in ('valu', 'vst', 'ldsw', 'ldsr', 'vld', 'dma'):
            if _ov(prev.wr, cur.rd) or _ov(prev.wr, cur.wr):
                n = max(n, 8)
            if ck == 'valu' and _ov(prev.srcC, cur.wr):
                n = max(n, 3)
    if pk == 'salu' and ('s', 124) in prev.wr and ck == 'dma':
        n = max(n, 1)
    if pk == 'vst' and prev.wide and ck in ('valu', 'ldsr', 'vld', 'mfma') and _ov(prev.data, cur.wr):
        n = max(n, 2)
    return n


def finish(seg, st=None, stats=None):
    st = st.copy() if st else State()
    out = []
    total = {}
    for ins in seg.ins:
        if ins.tok is not None and not ins.shadow:
            total[ins.tok] = total.get(ins.tok, 0) + 1
    seen = {}

    def emit(ins, states=1):
        out.append(ins.text)
        st.hist.append((ins, states))
        if len(st.hist) > 24:
            st.hist.pop(0)

    def do_wait(vm=None, lg=None):
        parts = []
        if vm is not None:
            assert vm <= 63, 'vmcnt overflow'
            parts.append('vmcnt(%d)' % vm)
            del st.vm[:len(st.vm) - vm]
        if lg is not None:
            lg = min(lg, 15)
            parts.append('lgkmcnt(%d)' % lg)
            if lg == 0:
                st.sm.clear()
            del st.lg[:max(len(st.lg) - lg, 0)]
        emit(Ins('s_waitcnt ' + ' '.join(parts)))

    for ins in seg.ins:
        if ins.raw or ins.kind in ('label',) or (ins.kind == 'none' and not ins.waits):
            if ins.text:
                out.append(ins.text)
            continue
        vm_need = lg_need = None
        for t in ins.waits:
            assert seen.get(t, 0) == total.get(t, -1), 'wait on token %s before all its ops were issued (%s)' % (t.name, seg.name)
        if ins.tok is not None and not ins.shadow:
            seen[ins.tok] = seen.get(ins.tok, 0) + 1
        touch = ins.rd + ins.wr
        for i, o in enumerate(st.vm):
            if (o.kind == 'vld' and _ov(o.wr, touch)) or (o.tok is not None and o.tok in ins.waits):
                n = len(st.vm) - 1 - i
                vm_need = n if vm_need is None else min(vm_need, n)
        for i, o in enumerate(st.lg):
            if (o.kind == 'ldsr' and _ov(o.wr, touch)) or (o.tok is not None and o.tok in ins.waits):
                n = len(st.lg) - 1 - i
                lg_need = n if lg_need is None else min(lg_need, n)
        for o in st.sm:
            if _ov(o.wr, touch):
                lg_need = 0
        if lg_need is not None and st.sm:
            lg_need = 0
        if ins.shadow:
            assert vm_need is None and lg_need is None, 'shadow instruction needs a wait: ' + ins.text
        if vm_need is not None or lg_need is not None:
            do_wait(vm_need, lg_need)
        if ins.kind == 'none':
            continue
        if ins.kind == 'wait':
            m = re.search(r'vmcnt\((\d+)\)', ins.text)
            if m:
                k = int(m.group(1))
                del st.vm[:max(len(st.vm) - k, 0)]
            m = re.search(r'lgkmcnt\((\d+)\)', ins.text)
            if m:
                k = int(m.group(1))
                if k == 0:
                    st.sm.clear()
                del st.lg[:max(len(st.lg) - k, 0)]
            emit(ins)
            continue
        dist = 0
        pad = 0
        for prev, states in reversed(st.hist):
            need = need_states(prev, ins)
            if need > dist:
                pad = max(pad, need - dist)
            dist += states
            if dist >= 12:
                break
        while pad > 0:
            k = min(pad, 16)
            emit(Ins('s_nop %d' % (k - 1)), k)
            if stats is not None:
                stats['nop'] = stats.get('nop', 0) + k
            pad -= k
        states = 1
        if ins.kind == 'nop':
            states = int(ins.ops[0]) + 1
        emit(ins, states)
        if ins.shadow:
            continue
        if ins.kind in ('vld', 'vst', 'dma'):
            st.vm.append(ins)
            assert len(st.vm) <= 63, 'too many vmem ops in flight at ' + ins.text
        elif ins.kind in ('ldsr', 'ldsw'):
            st.lg.append(ins)
            if len(st.lg) > 15 and stats is not None:
                stats['lg_over'] = stats.get('lg_over', 0) + 1
        elif ins.kind == 'smem':
            st.sm.append(ins)
    return out, st


def interleave(main, bg, every=1, start=0):
    out = []
    bg = list(bg)
    c = 0
    for i, m in enumerate(main):
        out.append(m)
        if i >= start and bg:
            c += 1
            if c >= every:
                out.append(bg.pop(0))
                c = 0
    out += bg
    return out


def cost_of(x):
    if isinstance(x, (list, tuple)):
        return sum(cost_of(y) for y in x)
    if isinstance(x, str):
        x = Ins(x)
    if x.raw:
        return 0
    if x.kind == 'none':
        return 4 if x.waits else 0
    if x.mn.replace('_e32', '') in TRANS:
        return 8
    return 4


class Gaps:
    def __init__(self):
        self.m = []
        self.pre = {}
        self.gap = {}
        self.load = {}

    def add(self, text):
        self.m.append(text)
        return len(self.m) - 1

    def before(self, idx, item):
        self.pre.setdefault(idx, []).append(item)
        self.load[idx - 1] = self.load.get(idx - 1, 0) + cost_of(item)

    def put(self, idx, item):
        idx = max(0, min(idx, len(self.m) - 1))
        self.gap.setdefault(idx, []).append(item)
        self.load[idx] = self.load.get(idx, 0) + cost_of(item)
        return idx

    def place(self, items, start, vspace=4, cap=8, end=None):
        g = start
        lastv = -10 ** 9
        end = len(self.m) - 1 if end is None else end
        for it in items:
            ins = Ins(it) if isinstance(it, str) else it
            isv = any(y.kind in ('vld', 'vst', 'dma') for y in (ins if isinstance(ins, list) else [ins]))
            c = cost_of(ins)
            if isv:
                g = max(g, lastv + vspace)
            while g < end and self.load.get(g, 0) + c > max(cap, c + 4) and c > 0:
                g += 1
            g = min(g, end)
            self.put(g, ins)
            if isv:
                lastv = g
        return g

    def emit(self, seg):
        for i, m in enumerate(self.m):
            seg.extend(self.pre.get(i, []))
            seg.I(m)
            seg.extend(self.gap.get(i, []))


def spread(main, bg, vgap=70, start=0):
    out = []
    bg = [Ins(b) if isinstance(b, str) else b for b in bg]
    t = 0
    lastv = start - vgap
    for m in main:
        out.append(m)
        c = cost_of(m)
        t += c + 1
        while bg and t >= start:
            nb = bg[0]
            if isinstance(nb, list):
                out.append(bg.pop(0))
                t += cost_of(nb)
                break
            if nb.kind in ('vld', 'vst', 'dma'):
                if t - lastv < vgap:
                    break
                lastv = t
            out.append(bg.pop(0))
            t += cost_of(nb)
            if nb.kind != 'none' and not nb.raw:
                break
    return out, bg
```

```python
import sys, struct, math
from asmlib import *

KN = "parallel_sum__sliding_local_dilated__mixer_gmlp__prompt_kernel"
STAMP = '--stamp' in sys.argv


def opt(name, default):
    for a in sys.argv:
        if a.startswith('--%s=' % name):
            return type(default)(a.split('=')[1])
    return default


WS_ZF, WS_Z1F, WS_OF, WS_HF = 0x4000, 0x8000, 0xC000, 0x10000
WS_STA, WS_STB = 0x20000, 0x60000
WS_Z2N, WS_Z1R, WS_O, WS_H = 0x100000, 0x500000, 0x900000, 0xB00000
WS_DBG = 0xF00000
WS_SIZE = 0x1000000
LZ_MISC, LZ_PRIV, LZ_NSLOT = 65536, 73728, 5
LQ_HALO, LQ_MISC, LQ_PRIV, LQ_NSLOT = 73728, 90112, 98304, 4
L3_PRIV = 98304
LDS_BYTES = 163840
PHI = 0x9E3779B9
SPIN = 1 << 15


def f2u(x):
    return struct.unpack('<I', struct.pack('<f', x))[0]


def V(i, n=1):
    return 'v%d' % i if n == 1 else 'v[%d:%d]' % (i, i + n - 1)


def A(i, n=1):
    return 'a%d' % i if n == 1 else 'a[%d:%d]' % (i, i + n - 1)


def S(i, n=1):
    return 's%d' % i if n == 1 else 's[%d:%d]' % (i, i + n - 1)


sXw, sX, sW, sS, sWS, sWO, sWOUT, sOUT, sB, sDBG = (S(i, 4) for i in (4, 8, 12, 16, 20, 24, 28, 32, 36, 40))
sWave, sRb, sCg, sK1 = 44, 45, 46, 47
sDA, sDB = 64, 66
sTbl, sRho3 = 68, 69
sTb, sJ, sK2, sTag, sWm, sWd, sRho2, sPriv = 70, 71, 72, 73, 74, 75, 76, 77
sFr = 78
sLN = 86
sLN2 = 88
sGE = 90
sPar = 92
sB2 = 94
sCnt = 96
sAcc = 98
sSt1, sSt2 = 100, 101
sJl = 3
sSt = 48

vLane, vL16, vRd0, vRd1 = 0, 1, 2, 3
vXa, vSa, vWa, vTr = 4, 8, 12, 16
vOnes, vTag = 24, 28
vB = 32
NB = 8


def xreg(i, b):
    return A(128 + 8 * i + 4 * b, 4)


def sreg(i, bb):
    if i < 8:
        return A(16 * i + 4 * bb, 4)
    if i < 12:
        return V(192 + 16 * (i - 8) + 4 * bb, 4)
    return A(128 + 16 * (i - 12) + 4 * bb, 4)


def mfma(d, a, b, c):
    return 'v_mfma_f32_16x16x32_bf16 %s, %s, %s, %s' % (d, a, b, c)


SLIST = opt('sset', 'o0,p1e,pub,p2,p2go,p2e,hgo,end').split(',')
assert len(SLIST) <= 7 or True


def stamp_ins(name):
    if STAMP and name in SLIST[:7]:
        return [Ins('s_memtime %s' % S(sSt + 2 + 2 * SLIST.index(name), 2), raw=True)]
    return []


def stamp(seg, name):
    seg.extend(stamp_ins(name))


uid = [0]


def lab(p):
    uid[0] += 1
    return '%s_%d' % (p, uid[0])


tail_code = []


def prologue():
    g = Seg('pro')
    if STAMP:
        g.raw('s_memtime s[98:99]')
        g.raw('s_memrealtime s[96:97]')
    g.I('s_cmp_ge_u32 s2, 256')
    g.I('s_cbranch_scc1 L_end')
    g.I('s_load_dwordx16 s[48:63], s[0:1], 0')
    g.I('s_load_dwordx4 s[64:67], s[0:1], 64')
    g.I('s_load_dwordx2 s[68:69], s[0:1], 80')
    g.I('v_lshrrev_b32 v29, 6, v0')
    g.I('v_and_b32 v0, 63, v0')
    g.I('v_readfirstlane_b32 %s, v29' % S(sWave))
    g.I('s_and_b32 s82, s2, 7')
    g.I('s_lshr_b32 s83, s2, 3')
    g.I('s_and_b32 s84, s82, 3')
    g.I('s_lshl_b32 s84, s84, 2')
    g.I('s_lshr_b32 s85, s83, 3')
    g.I('s_add_u32 %s, s84, s85' % S(sRb))
    g.I('s_and_b32 %s, s83, 7' % S(sCg))
    g.I('s_lshl_b32 s85, s85, 1')
    g.I('s_add_u32 s85, s85, %s' % S(sCg))
    g.I('s_and_b32 s85, s85, 7')
    g.I('s_lshl_b32 %s, s85, 7' % S(sK1))
    g.I('v_lshrrev_b32 v29, 3, v0')
    g.I('v_lshrrev_b32 v30, 4, v0')
    g.I('v_and_b32 v31, 7, v0')
    g.I('v_xor_b32 v31, v31, v30')
    g.I('v_lshlrev_b32 v31, 4, v31')
    g.I('v_lshl_add_u32 v4, v29, 10, v31')
    g.I('v_xor_b32 v5, 64, v4')
    g.I('v_add_u32 v5, %d, v5' % (8192 - 1024))
    g.I('v_add_u32 v6, %d, v4' % (2 * (8192 - 1024)))
    g.I('v_add_u32 v7, %d, v5' % (2 * (8192 - 1024)))
    g.I('s_lshl_b32 s84, %s, 17' % S(sRb))
    g.I('s_lshl_b32 s85, %s, 15' % S(sWave))
    g.I('s_add_u32 %s, s84, s85' % S(sWd))
    g.I('s_cmp_ge_u32 s82, 4')
    g.I('s_cbranch_scc1 L_p1q')
    return g


def srd_first(g, wlo, whi, wsize, wofs):
    g.I('s_waitcnt lgkmcnt(0)')
    g.I('s_add_u32 s4, s48, %s' % S(sWd))
    g.I('s_addc_u32 s5, s49, 0')
    g.I('s_sub_u32 s6, 0x200000, %s' % S(sWd))
    g.I('s_mov_b32 s7, 0x20000')
    if wofs is None:
        g.I('s_mov_b32 s12, s%d\ns_mov_b32 s13, s%d\ns_mov_b32 s14, 0x%x' % (wlo, whi, wsize))
    else:
        g.I('s_add_u32 s12, s%d, %s\ns_addc_u32 s13, s%d, 0\ns_sub_u32 s14, 0x%x, %s' % (wlo, wofs, whi, wsize, wofs))
    g.I('s_mov_b32 s15, 0x20000')


def setup_rest():
    o = []
    o += ['s_mov_b32 s20, s68', 's_mov_b32 s21, s69', 's_mov_b32 s22, 0x%x' % WS_SIZE, 's_mov_b32 s23, 0x20000']
    o += ['buffer_load_dword %s, off, %s, 0 sc1' % (V(vTag), sWS)]
    o += ['s_mov_b32 s8, s48', 's_mov_b32 s9, s49', 's_mov_b32 s10, 0x200000', 's_mov_b32 s11, 0x20000']
    o += ['s_mov_b32 s24, s52', 's_mov_b32 s25, s53', 's_mov_b32 s26, 0x80000', 's_mov_b32 s27, 0x20000']
    o += ['s_mov_b32 s28, s62', 's_mov_b32 s29, s63', 's_mov_b32 s30, 0xe0000', 's_mov_b32 s31, 0x20000']
    o += ['s_mov_b32 s32, s64', 's_mov_b32 s33, s65', 's_mov_b32 s34, 0x200000', 's_mov_b32 s35, 0x20000']
    o += ['s_mov_b32 s36, s60', 's_mov_b32 s37, s61', 's_mov_b32 s38, 0x1000', 's_mov_b32 s39, 0x20000']
    o += ['s_mov_b32 s40, s66', 's_mov_b32 s41, s67', 's_mov_b32 s42, 256', 's_mov_b32 s43, 0x20000']
    o += ['s_and_b32 s84, s2, 7', 's_lshr_b32 s85, s2, 3', 's_lshr_b32 %s, s85, 2' % S(sTbl), 's_and_b32 %s, s85, 3' % S(sJl),
          's_lshr_b32 s85, s84, 1', 's_lshl_b32 s85, s85, 3', 's_add_u32 %s, s85, %s' % (S(sTb), S(sTbl)),
          's_and_b32 s84, s84, 1', 's_lshl_b32 s84, s84, 2', 's_add_u32 %s, s84, %s' % (S(sJ), S(sJl)),
          's_lshl_b32 s84, %s, 1' % S(sJl), 's_add_u32 s84, s84, %s' % S(sTbl), 's_and_b32 %s, s84, 7' % S(sRho2),
          's_lshl_b32 %s, %s, 7' % (S(sK2), S(sRho2))]
    o += ['s_lshl_b32 s84, %s, 18' % S(sTb), 's_lshl_b32 s85, %s, 10' % S(sWave), 's_add_u32 s84, s84, s85',
          ['s_sub_u32 s16, s58, 3072', 's_subb_u32 s17, s59, 0'], ['s_add_u32 s16, s16, s84', 's_addc_u32 s17, s17, 0'],
          's_sub_u32 s18, 0x%x, s84' % (0x800000 + 3072), 's_mov_b32 s19, 0x20000']
    if STAMP:
        o += ['s_mov_b32 s48, s98', 's_mov_b32 s1, s96']
    o += ['s_and_b32 s84, %s, 2' % S(sWave), 's_lshl_b32 %s, s84, 16' % S(sDA), 's_xor_b32 %s, %s, 0x20000' % (S(sDA + 1), S(sDA)),
          's_add_u32 s85, %s, 1' % S(sWave), 's_and_b32 s84, s85, 2', 's_lshl_b32 %s, s84, 16' % S(sDB),
          's_xor_b32 %s, %s, 0x20000' % (S(sDB + 1), S(sDB))]
    o += ['v_lshrrev_b32 v29, 3, v0', 'v_lshrrev_b32 v30, 4, v0', 'v_and_b32 v31, 7, v0', 'v_xor_b32 v31, v31, v30',
          'v_lshlrev_b32 v31, 4, v31', 'v_lshl_add_u32 v31, v29, 12, v31', 'v_xor_b32 v30, 64, v31',
          's_and_b32 s84, %s, 1' % S(sWave), 's_lshl_b32 s84, s84, 16', 's_xor_b32 s85, s84, 0x10000',
          's_add_u32 s83, s84, 3072', 'v_add_u32 v8, s83, v31', 's_add_u32 s83, s84, %d' % (8 * 4096 + 2048), 'v_add_u32 v9, s83, v30',
          's_add_u32 s83, s85, 1024', 'v_add_u32 v10, s83, v31', 's_add_u32 s83, s85, %d' % (8 * 4096), 'v_add_u32 v11, s83, v30']
    o += ['v_lshlrev_b32 %s, 4, v0' % V(vL16), 'v_and_b32 v29, 15, v0', 'v_lshrrev_b32 v30, 4, v0', 'v_lshrrev_b32 v31, 1, v29',
          'v_xor_b32 v31, v31, v30', 'v_lshlrev_b32 v31, 4, v31', 'v_lshl_add_u32 v31, v29, 7, v31',
          'v_add_u32 v2, %s, v31' % S(sPriv), 'v_xor_b32 v3, 64, v2']
    c1 = -2.0 * math.sqrt(2.0 / math.pi) * math.log2(math.e)
    for r, val in ((sLN, f2u(1.0 / 512)), (sLN + 1, f2u(1e-5)), (sLN2, f2u(1.0 / 896)), (sLN2 + 1, f2u(1e-5)),
                   (sGE, f2u(c1 * 0.044715)), (sGE + 1, f2u(c1)), (sPar, 0xaaaaaaaa), (sPar + 1, 0xaaaaaaaa),
                   (sB2, 0xcccccccc), (sB2 + 1, 0xcccccccc)):
        o.append('s_mov_b32 %s, 0x%x' % (S(r), val))
    for i in range(4):
        o.append('v_mov_b32 %s, 0x3f803f80' % V(vOnes + i))
    return o


def tag_publish():
    return ['v_add_u32 %s, 0x%x, %s' % (V(vTag), PHI, V(vTag)),
            'v_cmp_eq_u32 vcc, 0, %s' % V(vTag),
            'v_mov_b32 v29, 0x%x' % PHI,
            's_lshl_b32 s85, s2, 2',
            'v_cndmask_b32 %s, %s, v29, vcc' % (V(vTag), V(vTag)),
            's_or_b32 s85, s85, %s' % S(sWave),
            's_lshl_b32 s85, s85, 6',
            'v_or_b32 v29, s85, v0',
            'v_cmp_eq_u32 vcc, 0, v29',
            'v_mov_b32 v30, 0x7ffffff0',
            's_nop 0',
            'v_cndmask_b32 v29, v30, 0, vcc',
            'buffer_store_dword %s, v29, %s, 0 offen sc1' % (V(vTag), sWS),
            'buffer_store_dword %s, v29, %s, 0 offen sc1' % (V(vTag), sDBG)]


TAG_FETCH = 'buffer_load_dword %s, off, %s, 0 sc1' % (V(vTag), sDBG)


def tag_check(g):
    ls, lr = lab('L_tagslow'), lab('L_tagret')
    g.I('v_readfirstlane_b32 %s, %s' % (S(sTag), V(vTag)))
    g.I('s_cmp_eq_u32 %s, 0' % S(sTag))
    g.I('s_cbranch_scc1 %s' % ls)
    g.label(lr)
    tail_code.append("""%s:
s_mov_b32 s%d, %d
%s_l:
s_sleep 1
buffer_load_dword v%d, off, %s, 0 sc1
s_waitcnt vmcnt(0)
v_readfirstlane_b32 s%d, v%d
s_sub_u32 s%d, s%d, 1
s_cbranch_scc1 %s
s_cmp_eq_u32 s%d, 0
s_cbranch_scc1 %s_l
s_branch %s""" % (ls, sCnt, SPIN, ls, vTag, sDBG, sTag, vTag, sCnt, sCnt, lr, sTag, ls, lr))


def poll_items(alts, tagregs, tmp):
    ls, lr = lab('L_pslow'), lab('L_pret')
    chk = []
    regs = list(tagregs)
    chk.append('v_xor_b32 %s, %s, %s' % (V(tmp), V(regs[0]), V(vTag)))
    for r in regs[1:]:
        chk.append('v_xor_b32 %s, %s, %s' % (V(r), V(r), V(vTag)))
    rest = regs[1:]
    while rest:
        if len(rest) >= 2:
            chk.append('v_or3_b32 %s, %s, %s, %s' % (V(tmp), V(tmp), V(rest[0]), V(rest[1])))
            rest = rest[2:]
        else:
            chk.append('v_or_b32 %s, %s, %s' % (V(tmp), V(tmp), V(rest[0])))
            rest = []
    chk.append('v_cmp_ne_u32 vcc, 0, %s' % V(tmp))
    items = [mk(c) for c in chk] + [mk('s_cbranch_vccnz %s' % ls), Ins(lr + ':')]
    t = ['%s:' % ls, 's_mov_b32 s%d, %d' % (sCnt, SPIN), '%s_l:' % ls]
    for k, loads in enumerate(alts):
        t += loads
        t += ['s_waitcnt vmcnt(0)'] + chk + ['s_nop 1', 's_cbranch_vccz %s' % lr]
    t += ['s_sleep 1', 's_sub_u32 s%d, s%d, 1' % (sCnt, sCnt), 's_cbranch_scc0 %s_l' % ls, 's_branch %s' % lr]
    tail_code.append('\n'.join(t))
    return items


def flag_items(toks, base, i1, i2, xor=0):
    o = ['s_lshl_b32 s84, %s, 3' % S(i1)]
    if xor:
        o += ['s_xor_b32 s85, %s, %d' % (S(i2), xor), 's_add_u32 s84, s84, s85']
    else:
        o += ['s_add_u32 s84, s84, %s' % S(i2)]
    o += ['s_lshl_b32 s84, s84, 5', 's_add_u32 s84, s84, %s' % S(sWave), 's_lshl_b32 s84, s84, 2', 's_add_u32 s84, s84, 0x%x' % base]
    return [mk(x) for x in o] + [mkwait(*toks), mk('buffer_store_dword %s, off, %s, s84 sc1' % (V(vTag), sWS))]


class Priv:
    def __init__(self, nslot):
        self.nslot = nslot
        self.dma, self.rd, self.slot = {}, {}, {}
        self.owner = {}
        self.cnt = 0
        self.pp = 0

    def issue(self, n):
        out = []
        sl = self.cnt % self.nslot
        self.cnt += 1
        if sl in self.owner:
            out.append(mkwait(self.rd[self.owner[sl]]))
        self.owner[sl] = n
        self.slot[n] = sl
        t = self.dma[n] = Tok('P%d' % n)
        out.append(mk('s_add_u32 m0, %s, %d' % (S(sPriv), sl * 4096)))
        if n < 8:
            for q in range(4):
                out.append(mk('buffer_load_dwordx4 %s, %s, %s offen offset:%d lds' % (V(vXa + q), sXw, S(sK1), 1024 * q), tok=t))
        else:
            h = (n - 8) & 1
            pp = (n - 8) >> 1
            if pp != self.pp:
                out.append(mk('s_add_u32 %s, %s, %d' % (S(sK2), S(sK2), ((pp - self.pp) & 7) * 128)))
                out.append(mk('s_and_b32 %s, %s, 0x380' % (S(sK2), S(sK2))))
                self.pp = pp
            out.append(mk('s_add_u32 s82, %s, %s' % (S(sK2), S(sDA + h))))
            out.append(mk('s_add_u32 s83, %s, %s' % (S(sK2), S(sDB + h))))
            for q in range(4):
                out.append(mk('buffer_load_dwordx4 %s, %s, s%d offen offset:%d lds' % (V(vSa + q), sS, 82 + (q >> 1), 1024 * q), tok=t))
        return out

    def read(self, n):
        out = [mkwait(self.dma[n])]
        t = self.rd[n] = Tok('PR%d' % n)
        for e in range(2):
            for b in range(2):
                if n < 8:
                    dst = xreg(2 * n + e, b)
                else:
                    gi = n - 8
                    dst = sreg(2 * (gi >> 1) + e, 2 * (gi & 1) + b)
                out.append(mk('ds_read_b128 %s, %s offset:%d' % (dst, V(vRd0 + e), self.slot[n] * 4096 + b * 2048), tok=t))
        return out


K1_NEXT = ['s_add_u32 %s, %s, 128' % (S(sK1), S(sK1)), 's_and_b32 %s, %s, 0x380' % (S(sK1), S(sK1))]


def build_pass(uses, open_items, L=6):
    G = Gaps()
    first = []
    for u, (st, rds, ms) in enumerate(uses):
        base = vB + 4 * (u % NB)
        first.append(len(G.m))
        for m in ms:
            G.add(m.replace('%B', V(base, 4)))
    pre = []
    opened = {}
    toks = {}
    for u, (st, rds, ms) in enumerate(uses):
        base = vB + 4 * (u % NB)
        t = toks[u] = Tok('B%d' % u)
        r = [mk(rds[h] % V(base + 2 * h, 2), tok=t) for h in range(2)]
        if u < L:
            if st not in opened:
                opened[st] = -1
                pre += open_items(st)
            pre += r
        else:
            g0 = first[u - L]
            if st not in opened:
                opened[st] = g0
                for it in open_items(st):
                    G.put(g0, it)
            G.put(g0, r[0])
            G.put(g0 + 1, r[1])
    for u in range(0, len(uses) - 1, 2):
        G.before(first[u], mkwait(toks[u + 1]))
    return pre, G, first, opened


def row_stats(g, vSM, vSSd, n):
    for i in range(0, n, 2):
        g.I('v_pk_mul_f32 %s, %s, %s op_sel_hi:[1,0]' % (V(vSM + i, 2), V(vSM + i, 2), S(sLN, 2)))
    for i in range(0, n, 2):
        g.I('v_pk_mul_f32 %s, %s, %s op_sel_hi:[1,0]' % (V(vSSd + i, 2), V(vSSd + i, 2), S(sLN, 2)))
    for i in range(0, n, 2):
        g.I('v_pk_fma_f32 %s, %s, %s, %s neg_lo:[1,0,0] neg_hi:[1,0,0]' % (V(vSSd + i, 2), V(vSM + i, 2), V(vSM + i, 2), V(vSSd + i, 2)))
    for i in range(n):
        g.I('v_max_f32 %s, 0, %s' % (V(vSSd + i), V(vSSd + i)))
    for i in range(0, n, 2):
        g.I('v_pk_add_f32 %s, %s, %s op_sel:[0,1] op_sel_hi:[1,1]' % (V(vSSd + i, 2), V(vSSd + i, 2), S(sLN, 2)))
    for i in range(n):
        g.I('v_rsq_f32 %s, %s' % (V(vSSd + i), V(vSSd + i)))
    for i in range(0, n, 2):
        g.I('v_pk_mul_f32 %s, %s, %s' % (V(vSM + i, 2), V(vSM + i, 2), V(vSSd + i, 2)))


def to_lane_layout(src4, dst, vaddr, t0, t1):
    return ['v_cndmask_b32 %s, %s, %s, %s' % (V(t0), V(src4), V(src4 + 1), S(sPar, 2)),
            'v_cndmask_b32 %s, %s, %s, %s' % (V(t1), V(src4 + 2), V(src4 + 3), S(sPar, 2)),
            'v_cndmask_b32 %s, %s, %s, %s' % (V(t0), V(t0), V(t1), S(sB2, 2)),
            'ds_bpermute_b32 %s, %s, %s' % (V(dst), V(vaddr), V(t0))]


def gelu_pairs(pairs, tmp):
    st = [[] for _ in range(8)]
    for y, t in zip(pairs, tmp):
        Y, T = V(y, 2), V(t, 2)
        st[0].append('v_pk_mul_f32 %s, %s, %s' % (T, Y, Y))
        st[1].append('v_pk_fma_f32 %s, %s, %s, %s op_sel:[0,0,1] op_sel_hi:[1,0,1]' % (T, T, S(sGE, 2), S(sGE, 2)))
        st[2].append('v_pk_mul_f32 %s, %s, %s' % (T, T, Y))
        st[3].append('v_exp_f32 %s, %s' % (V(t), V(t)))
        st[3].append('v_exp_f32 %s, %s' % (V(t + 1), V(t + 1)))
        st[4].append('v_pk_add_f32 %s, %s, 1.0 op_sel_hi:[1,0]' % (T, T))
        st[5].append('v_rcp_f32 %s, %s' % (V(t), V(t)))
        st[5].append('v_rcp_f32 %s, %s' % (V(t + 1), V(t + 1)))
        st[6].append('v_pk_mul_f32 %s, %s, %s' % (Y, Y, T))
    return [x for s_ in st for x in s_]


def block_start(q, dst):
    return ['s_lshr_b32 s83, %s, 1' % q, 's_and_b32 s84, s83, 1', 's_lshl_b32 s84, s84, 1', 's_sub_u32 s84, 8, s84',
            's_and_b32 s85, %s, 1' % q, 's_mul_i32 s84, s84, s85', 's_mul_i32 s83, s83, 14', 's_add_u32 %s, s83, s84' % dst]


def p1z_head():
    g = Seg('p1zh')
    g.extend(block_start(S(sCg), S(sSt1)))
    g.I('s_and_b32 s82, %s, 0xfc' % S(sSt1))
    g.I('s_lshl_b32 s82, s82, 5')
    g.I('s_add_u32 s82, s82, 1792')
    g.I('s_mul_i32 %s, %s, %d' % (S(sPriv), S(sWave), LZ_NSLOT * 4096))
    g.I('s_add_u32 %s, %s, %d' % (S(sPriv), S(sPriv), LZ_PRIV))
    g.I('s_lshl_b32 %s, %s, 12' % (S(sWm), S(sWave)))
    g.I('v_bfe_u32 v29, v0, 1, 3')
    g.I('v_xor_b32 v29, v29, v30')
    g.I('v_lshlrev_b32 v29, 5, v29')
    g.I('v_and_b32 v31, 1, v0')
    g.I('v_lshl_or_b32 v29, v31, 4, v29')
    g.I('s_lshl_b32 s83, %s, 4' % S(sWave))
    g.I('v_add_u32 v30, s83, v30')
    g.I('v_mul_u32_u24 v30, 3584, v30')
    g.I('v_add_u32 v12, v30, v29')
    g.I('v_add_u32 v13, %d, v12' % (4 * 3584 - 1024))
    g.I('v_xor_b32 v29, 128, v29')
    g.I('v_add_u32 v14, v30, v29')
    g.I('v_add_u32 v15, %d, v14' % (12 * 3584 - 3072))
    g.I('v_add_u32 v14, %d, v14' % (8 * 3584 - 2048))
    srd_first(g, 56, 57, 0x1c0000, 's82')
    g.I('s_mov_b32 %s, s82' % S(sWd))
    g.I('s_lshr_b32 s83, %s, 1' % S(sCg))
    g.I('s_xor_b32 s83, s83, %s' % S(sCg))
    g.I('s_bitcmp1_b32 s83, 0')
    g.I('s_cbranch_scc1 L_p1z6')
    return g


def p1z(n1):
    n2 = 14 - n1
    g = Seg('p1z%d' % n1)
    P = Priv(LZ_NSLOT)
    acc1 = 64
    acc2 = 64 + 8 * n1
    vSM, vSS, vCS = acc2, acc2 + 8, acc2 + 16
    vCS2, vRt = 176, 184
    vZo = 4
    wtok = {}

    def w_issue(s):
        t = wtok[s] = Tok('W%d' % s)
        out = []
        if s == 8:
            out += [mk(['s_sub_u32 s12, s12, %s' % S(sWd), 's_subb_u32 s13, s13, 0']), mk('s_add_u32 s14, s14, %s' % S(sWd))]
        out += [mk('s_add_u32 m0, %s, %d' % (S(sWm), (s & 3) * 16384)), mk('s_mul_i32 s82, %s, 1792' % S(sK1))]
        for t4 in range(4):
            out.append(mk('buffer_load_dwordx4 %s, %s, s82 offen offset:%d lds' % (V(vWa + t4), sW, 1024 * t4), tok=t))
        out += [mk(x) for x in K1_NEXT]
        return out

    def tr_setup(n, st):
        o = ['v_bfe_u32 v29, v0, 2, 2', 'v_lshrrev_b32 v30, 4, v0', 'v_lshl_add_u32 v31, v30, 3, v29', 'v_lshlrev_b32 v31, 8, v31',
             'v_and_b32 v30, 1, v30', 'v_lshl_or_b32 v29, v30, 2, v29', 'v_and_b32 v30, 3, v0', 'v_lshl_or_b32 v31, v30, 3, v31',
             's_and_b32 s97, %s, 3' % S(st)]
        for pp in range(n // 2):
            o += ['s_add_u32 s84, %s, %d' % (S(sWave), pp), ['s_cmp_ge_u32 s84, %d' % (n // 2), 's_cselect_b32 s85, %d, 0' % (n // 2)],
                  's_sub_u32 s84, s84, s85', 's_lshl_b32 s84, s84, 1', 's_add_u32 %s, s84, s97' % S(sFr + pp),
                  'v_xor_b32 v30, %s, v29' % S(sFr + pp), 'v_lshl_or_b32 %s, v30, 5, v31' % V(vTr + 2 * pp),
                  'v_xor_b32 %s, 32, %s' % (V(vTr + 2 * pp + 1), V(vTr + 2 * pp))]
        return o

    g.extend(P.issue(0))
    g.extend(w_issue(0))
    rest = setup_rest() + tr_setup(n1, sSt1)
    rest += ['s_xor_b32 s97, %s, 1' % S(sCg)] + block_start('s97', S(sSt2))
    rest += ['s_and_b32 s84, %s, 0xfc' % S(sSt2), 's_lshl_b32 s84, s84, 5', 's_sub_u32 %s, %s, s84' % (S(sWd), S(sWd))]
    m, left = spread([mk(x) for x in rest], P.issue(1) + w_issue(1), vgap=60, start=opt('st1', 100))
    g.extend(m + left)
    g.extend(tag_publish())

    def uses_for(n, s0, acc, cs, first_pass):
        order = [(i, pos) for i in range(14) for pos in range(n)]
        order += [(14, 0), (14, 1), (15, 0), (15, 1)] + [(i, pos) for i in (14, 15) for pos in range(2, n)]
        us = []
        for i, pos in order:
            s, e = s0 + (i >> 1), i & 1
            off = (s & 3) * 16384 + e * 8192
            rds = ['ds_read_b64_tr_b16 %%s, %s offset:%d' % (V(vTr + pos), off + 1024 * h) for h in range(2)]
            ms = []
            for b in range(2):
                d = V(acc + 8 * pos + 4 * b, 4)
                c = d if i else '0'
                ms.append(mfma(d, xreg(i, b), '%B', c) if first_pass else mfma(d, '%B', xreg(i, b), c))
            if pos < 2:
                d = V(cs + 4 * pos, 4)
                c = d if i else '0'
                ms.append(mfma(d, V(vOnes, 4), '%B', c) if first_pass else mfma(d, '%B', V(vOnes, 4), c))
            if first_pass:
                ks = []
                if i < 14 and 2 <= pos < 6:
                    ks = [pos - 2]
                if i >= 14 and pos < 2:
                    ks = [2 * pos, 2 * pos + 1]
                for k in ks:
                    b = k & 1
                    if k < 2:
                        d = V(vSS + 4 * b, 4)
                        ms.append(mfma(d, xreg(i, b), xreg(i, b), d if i else '0'))
                    else:
                        d = V(vSM + 4 * b, 4)
                        ms.append(mfma(d, xreg(i, b), V(vOnes, 4), d if i else '0'))
            us.append((s, rds, ms))
        return us

    def open_items(s):
        it = [mkwait(wtok[s], *([P.dma[s]] if s < 8 else []))] + stamp_ins('o%d' % s) + [mk('s_barrier')]
        if s < 8:
            it += P.read(s)
        return it

    bgs = {}
    us = uses_for(n1, 0, acc1, vCS, True)

    def open1(s):
        it = open_items(s)
        bg = []
        if s + 2 < 8:
            bg += P.issue(s + 2)
        bg += w_issue(s + 2)
        if s >= 6:
            bg += P.issue(s + 2)
        if s == 3:
            bg.append(mk(TAG_FETCH))
        bgs[s] = bg
        return it

    pre, G, first, opened = build_pass(us, open1)
    gi = 0
    for s in range(8):
        gi = G.place(bgs[s], max(gi, opened[s] + 2), vspace=opt('vs1', 4))
    vCsv = acc2 + 24
    vSSd = acc2 + 16
    vS1 = acc2 + 32
    tcs = Tok('cs')
    gi = first[14 * n1 + 4]
    G.place(['v_and_b32 v29, 15, v0', 'v_lshlrev_b32 v29, 2, v29', 'v_add_u32 v29, %d, v29' % LZ_MISC, 's_lshl_b32 s84, %s, 6' % S(sFr),
             'v_add_u32 v30, s84, v29', 'v_lshrrev_b32 v31, 4, v0', 'v_mul_u32_u24 v31, 80, v31'], first[13 * n1])
    it = [mk('ds_write_b32 v30, %s' % V(vCS), tok=tcs), mk('ds_write_b32 v30, %s offset:64' % V(vCS + 4), tok=tcs)]
    gi = G.place(it, gi + 3, cap=12)
    it = [mkwait(tcs), mk('s_barrier')]
    for pp in range(n1 // 2):
        it += ['s_lshl_b32 s84, %s, 6' % S(sFr + pp), 'v_add_u32 v30, s84, v29', 'ds_read_b32 %s, v30' % V(vCsv + 2 * pp),
               'ds_read_b32 %s, v30 offset:64' % V(vCsv + 2 * pp + 1)]
    for b in range(2):
        for r in range(4):
            it.append('ds_bpermute_b32 %s, v31, %s offset:%d' % (V(vSSd + 4 * b + r), V(vSS + 4 * b + r), 4 * r))
    G.place(it, gi + 3, cap=12)
    g.extend(pre)
    G.emit(g)
    stamp(g, 'p1e')
    row_stats(g, vSM, vSSd, 8)
    tag_check(g)
    stamp(g, 'gel')
    main = []
    for pos in range(n1):
        pr = [acc1 + 8 * pos + 2 * k for k in range(4)]
        tm = [vB + 8 * (pos & 1) + 2 * k for k in range(4)]
        sel = 'op_sel_hi:[1,0]' if pos % 2 == 0 else 'op_sel:[0,1] op_sel_hi:[1,1]'
        cp = V(vCsv + (pos & ~1), 2)
        for k in range(4):
            main.append('v_pk_mul_f32 %s, %s, %s %s' % (V(tm[k], 2), V(vSM + 2 * k, 2), cp, sel))
        for k in range(4):
            main.append('v_pk_fma_f32 %s, %s, %s, %s neg_lo:[0,0,1] neg_hi:[0,0,1]' % (V(pr[k], 2), V(pr[k], 2), V(vSSd + 2 * k, 2), V(tm[k], 2)))
        main += gelu_pairs(pr, tm)
        for k in range(4):
            if pos == 0:
                main.append('v_pk_mul_f32 %s, %s, %s' % (V(vS1 + 8 + 2 * k, 2), V(pr[k], 2), V(pr[k], 2)))
            else:
                main.append('v_pk_fma_f32 %s, %s, %s, %s' % (V(vS1 + 8 + 2 * k, 2), V(pr[k], 2), V(pr[k], 2), V(vS1 + 8 + 2 * k, 2)))
            if pos == 1:
                main.append('v_pk_add_f32 %s, %s, %s' % (V(vS1 + 2 * k, 2), V(pr[k], 2), V(pr[k] - 8, 2)))
            elif pos > 1:
                main.append('v_pk_add_f32 %s, %s, %s' % (V(vS1 + 2 * k, 2), V(pr[k], 2), V(vS1 + 2 * k, 2)))
    bg = P.issue(10) + P.read(8) + P.issue(11) + P.read(9) + P.issue(12) + P.issue(13)
    if n1 == 8:
        bg += P.read(10) + P.issue(14) + P.read(11) + P.issue(15)
    m, left = spread([mk(x) for x in main], bg, vgap=opt('vgg', 80))
    g.extend(m)
    stamp(g, 'gle')
    vW_ = vB
    for k in range(2):
        for r in range(4):
            x0, x1, d = vS1 + 8 * k + r, vS1 + 8 * k + 4 + r, vW_ + 4 * k + r
            g.I('v_add_f32_dpp %s, %s, %s row_ror:8 row_mask:0xf bank_mask:0x3' % (V(d), V(x0), V(x0)))
    g.I('v_mov_b32 %s, %s' % (V(vTag), S(sTag)))
    for k in range(2):
        for r in range(4):
            x0, x1, d = vS1 + 8 * k + r, vS1 + 8 * k + 4 + r, vW_ + 4 * k + r
            g.I('v_add_f32_dpp %s, %s, %s row_ror:8 row_mask:0xf bank_mask:0xc' % (V(d), V(x1), V(x1)))
    vU = vB + 8
    vG = vB + 12
    adr = ['v_bfe_u32 v29, v0, 3, 1', 'v_lshlrev_b32 v29, 4, v29', 'v_bfe_u32 v30, v0, 4, 2', 'v_lshl_add_u32 v29, v30, 2, v29',
           'v_bfe_u32 v30, v0, 2, 1', 'v_lshl_add_u32 v29, v30, 1, v29', 'v_and_b32 v30, 1, v0', 'v_add_u32 v29, v29, v30',
           'v_lshlrev_b32 v29, 4, v29']
    for msk, ror, o in (('0x5', 12, 0), ('0xa', 4, 2)):
        for k in range(2):
            for r in range(2):
                x = vW_ + 4 * k + r + o
                g.I('v_add_f32_dpp %s, %s, %s row_ror:%d row_mask:0xf bank_mask:%s' % (V(vU + 2 * k + r), V(x), V(x), ror, msk))
        g.I(adr.pop(0))
        g.I(adr.pop(0))
    g.I('v_mov_b32 %s, %s' % (V(vG + 1), V(vTag)))
    for qp in ('[1,0,3,2]', '[2,3,0,1]'):
        for k in range(4):
            g.I('v_add_f32_dpp %s, %s, %s quad_perm:%s row_mask:0xf bank_mask:0xf' % (V(vU + k), V(vU + k), V(vU + k), qp))
        g.I(adr.pop(0))
        g.I(adr.pop(0))
    g.I(adr.pop(0))
    g.I('v_mov_b32 %s, %s' % (V(vG + 3), V(vTag)))
    g.I('v_cndmask_b32 %s, %s, %s, %s' % (V(vG), V(vU), V(vU + 1), S(sPar, 2)))
    g.I('v_cndmask_b32 %s, %s, %s, %s' % (V(vG + 2), V(vU + 2), V(vU + 3), S(sPar, 2)))
    g.I('s_lshl_b32 s84, %s, 14' % S(sRb))
    g.I('s_lshl_b32 s85, %s, 9' % S(sWave))
    g.I('s_add_u32 s0, s84, s85')
    g.I('s_add_u32 s0, s0, 0x%x' % WS_STA)
    g.I('s_lshl_b32 s85, %s, 11' % S(sCg))
    g.I('s_add_u32 s84, s85, s0')
    g.I('s_add_u32 s85, s84, 0x%x' % (WS_STB - WS_STA))
    g.I('buffer_store_dwordx4 %s, v29, %s, s84 offen' % (V(vG, 4), sWS))
    g.I('buffer_store_dwordx4 %s, v29, %s, s85 offen sc1' % (V(vG, 4), sWS))
    stamp(g, 'pub')
    g.extend(left)
    g.I('v_and_b32 v30, 15, v0')
    g.I('v_lshrrev_b32 v31, 2, v30')
    g.I('v_lshl_add_u32 v31, v31, 4, v30')
    g.I('v_lshlrev_b32 v31, 2, v31')
    for b in range(2):
        g.extend(to_lane_layout(vSSd + 4 * b, vRt + 2 * b, 31, vB, vB + 1))
        g.extend(to_lane_layout(vSM + 4 * b, vRt + 2 * b + 1, 31, vB + 2, vB + 3))
    for pp in range(n1 // 2):
        g.I('s_lshl_b32 s84, %s, 10' % S(sFr + pp))
        g.I('v_add_u32 %s, s84, %s' % (V(vZo + pp), V(vL16)))
    g.extend(tr_setup(n2, sSt2))
    vGa, vR2, vQ, vGad = 192, 208, 224, 188
    g.I('v_and_b32 v29, 31, v0')
    g.I('v_lshlrev_b32 v29, 4, v29')
    g.I('v_lshrrev_b32 v30, 5, v0')
    g.I('v_lshl_add_u32 %s, v30, 11, v29' % V(vGad))
    g.I('s_waitcnt lgkmcnt(0)')

    def gather(delta):
        o = []
        for i in range(4):
            o.append('s_add_u32 s85, s0, 0x%x' % (4096 * i + delta))
            o.append('buffer_load_dwordx4 %s, %s, %s, s85 offen sc1' % (V(vGa + 4 * i, 4), V(vGad), sWS))
        return o

    nb = Seg('norm')
    nb.extend(stamp_ins('chk'))
    nb.extend(poll_items([gather(0), gather(WS_STB - WS_STA)], [vGa + 1 + 2 * i for i in range(8)], vR2))
    nb.extend(stamp_ins('got'))
    for k in range(2):
        nb.I('v_add_f32 %s, %s, %s' % (V(vGa + 2 * k), V(vGa + 2 * k), V(vGa + 4 + 2 * k)))
        nb.I('v_add_f32 %s, %s, %s' % (V(vGa + 8 + 2 * k), V(vGa + 8 + 2 * k), V(vGa + 12 + 2 * k)))
    for k in range(2):
        nb.I('v_add_f32 %s, %s, %s' % (V(vGa + 2 * k), V(vGa + 2 * k), V(vGa + 8 + 2 * k)))
    for k in range(2):
        nb.I('v_mov_b32 %s, %s' % (V(vGa + 2 * k + 1), V(vGa + 2 * k)))
    nb.I('s_lshl_b32 s85, %s, 8' % S(sWave))
    nb.I('s_add_u32 s85, s85, %d' % (LZ_MISC + 1024))
    for k in range(2):
        nb.I('v_permlane32_swap_b32 %s, %s' % (V(vGa + 2 * k), V(vGa + 2 * k + 1)))
    for k in range(2):
        nb.I('v_add_f32 %s, %s, %s' % (V(vGa + 2 * k), V(vGa + 2 * k), V(vGa + 2 * k + 1)))
    nb.I('v_mul_f32 %s, %s, %s' % (V(vGa), S(sLN2), V(vGa)))
    nb.I('v_mul_f32 %s, %s, %s' % (V(vGa + 2), S(sLN2), V(vGa + 2)))
    nb.I('v_and_b32 v29, 31, v0')
    nb.I('v_fma_f32 %s, -%s, %s, %s' % (V(vGa + 2), V(vGa), V(vGa), V(vGa + 2)))
    nb.I('v_lshl_add_u32 v29, v29, 2, s85')
    nb.I('v_max_f32 %s, 0, %s' % (V(vGa + 2), V(vGa + 2)))
    nb.I('v_lshrrev_b32 v30, 4, v0')
    nb.I('v_add_f32 %s, %s, %s' % (V(vGa + 2), S(sLN2 + 1), V(vGa + 2)))
    nb.I('v_lshl_add_u32 v30, v30, 4, s85')
    nb.I('v_rsq_f32 %s, %s' % (V(vGa + 2), V(vGa + 2)))
    tw = Tok('st2')
    nb.I('s_lshl_b32 s84, %s, 2' % S(sRb))
    nb.I('ds_write_b32 v29, %s' % V(vGa + 2), tok=tw)
    nb.I('v_mul_f32 %s, -%s, %s' % (V(vGa), V(vGa), V(vGa + 2)))
    nb.I('ds_write_b32 v29, %s offset:128' % V(vGa), tok=tw)
    for b in range(2):
        nb.I('ds_read_b128 %s, v30 offset:%d' % (V(vR2 + 4 * b, 4), 64 * b))
        nb.I('ds_read_b128 %s, v30 offset:%d' % (V(vR2 + 8 + 4 * b, 4), 128 + 64 * b))
    nb.I('s_add_u32 s84, s84, %s' % S(sWave))
    nb.I('s_mul_i32 s84, s84, 56')
    nb.I('s_and_b32 s85, %s, 0xfc' % S(sSt1))
    nb.I('s_add_u32 s84, s84, s85')
    nb.I('s_lshl_b32 s84, s84, 10')
    nb.I('s_add_u32 s84, s84, 0x%x' % WS_Z2N)
    tz = Tok('z2n')
    for pp in range(n1 // 2):
        for o in range(2):
            a = acc1 + 8 * (2 * pp + o)
            for k in range(4):
                nb.I('v_pk_fma_f32 %s, %s, %s, %s' % (V(a + 2 * k, 2), V(a + 2 * k, 2), V(vR2 + 2 * k, 2), V(vR2 + 8 + 2 * k, 2)))
        qs = [vQ + 8 * (pp & 1) + 4 * o for o in range(2)]
        for o in range(2):
            a = acc1 + 8 * (2 * pp + o)
            for k in range(4):
                nb.I('v_cvt_pk_bf16_f32 %s, %s, %s' % (V(qs[o] + k), V(a + 2 * k), V(a + 2 * k + 1)))
        for sw in ('v_permlane32_swap_b32', 'v_permlane16_swap_b32'):
            for q in qs:
                nb.I('%s %s, %s' % (sw, V(q), V(q + 2)))
                nb.I('%s %s, %s' % (sw, V(q + 1), V(q + 3)))
        for o in range(2):
            nb.I('buffer_store_dwordx4 %s, %s, %s, s84 offen offset:%d sc1' % (V(qs[o], 4), V(vZo + pp), sWS, 1024 * o), tok=tz)
    nb.extend(stamp_ins('nrm'))

    SG = opt('sg%d' % n1, 8 if n1 == 8 else 9)
    SN = opt('sn%d' % n1, 10 if n1 == 8 else 11)
    SF = opt('sf%d' % n1, SN + 2)
    prog = []
    if n1 == 6:
        prog += [('r', 10), ('i', 14), ('r', 11), ('i', 15)]
    prog += [('r', 12), ('i', 16), ('r', 13), ('i', 17), ('r', 14), ('i', 18), ('r', 15), ('i', 19), ('i', 20)]
    late = [('r', 16), ('i', 21), ('r', 17), ('i', 22), ('r', 18), ('i', 23), ('r', 19)]
    bgs = {}

    def take(lst, k):
        out = []
        while lst and k > 0:
            a, n = lst.pop(0)
            out += P.read(n) if a == 'r' else P.issue(n)
            if a == 'i':
                k -= 1
        while lst and lst[0][0] == 'r' and len(lst) == 1:
            out += P.read(lst.pop(0)[1])
        return out

    def open2(s):
        it = open_items(s)
        bg = []
        if s == SG:
            bg += [mk(x) for x in gather(0)]
        if s + 2 < 16:
            bg += w_issue(s + 2)
        if s == SF:
            bg = flag_items([tz], WS_ZF, sRb, sCg) + stamp_ins('zfl') + bg
        if s != SG:
            bg += take(prog, 1) if prog else (take(late, 1) if s >= SN else [])
        if s >= 14:
            bg += take(prog, 9) + take(late, 9)
        bgs[s] = bg
        return it

    us = uses_for(n2, 8, acc2, vCS2, False)
    pre, G, first, opened = build_pass(us, open2)
    ni = first[(SN - 8) * 2 * n2]
    G.pre.setdefault(ni, [])
    G.pre[ni] = nb.ins + G.pre[ni]
    gi = 0
    for s in range(8, 16):
        st = opened[s] + 2
        if s == SN:
            st = ni
        en = opened[s + 1] + 4 if s < 15 else None
        if s == SN - 1:
            en = ni - 1
        gi = G.place(bgs[s], max(gi, st), vspace=opt('vs2', 3), cap=opt('cap2', 12), end=en)
    tcs = Tok('cs2')
    G.place(['v_lshrrev_b32 v29, 4, v0', 'v_lshlrev_b32 v29, 4, v29', 'v_add_u32 v29, %d, v29' % (LZ_MISC + 512),
             's_lshl_b32 s84, %s, 6' % S(sFr), 'v_add_u32 v30, s84, v29'], first[13 * n2], cap=12)
    gi = G.place([mk('ds_write_b128 v30, %s' % V(vCS2, 4), tok=tcs), mk('ds_write_b128 v30, %s offset:64' % V(vCS2 + 4, 4), tok=tcs)],
                 first[14 * n2 + 4] + 3, cap=12)
    vC2 = acc1
    it = [mkwait(tcs), mk('s_barrier')]
    for pp in range(n2 // 2):
        it += ['s_lshl_b32 s84, %s, 6' % S(sFr + pp), 'v_add_u32 v30, s84, v29', 'ds_read_b128 %s, v30' % V(vC2 + 8 * pp, 4),
               'ds_read_b128 %s, v30 offset:64' % V(vC2 + 8 * pp + 4, 4)]
    G.place(it, gi + 3, cap=12)
    g.extend(pre)
    G.emit(g)
    stamp(g, 'p2z')
    for n in range(20, 24):
        g.extend(P.read(n))
    g.I('s_lshl_b32 s82, %s, 3' % S(sRb))
    g.I('s_lshl_b32 s83, %s, 1' % S(sWave))
    g.I('s_add_u32 s82, s82, s83')
    g.I('s_mul_i32 s82, s82, %d' % (28 * 1024))
    g.I('s_and_b32 s83, %s, 0xfc' % S(sSt2))
    g.I('s_lshl_b32 s83, s83, 9')
    g.I('s_add_u32 s82, s82, s83')
    g.I('s_add_u32 s82, s82, 0x%x' % WS_Z1R)
    tz1 = Tok('z1r')
    tq = vB
    for pp in range(n2 // 2):
        g.I('s_lshl_b32 s83, %s, 9' % S(sFr + pp))
        g.I('s_add_u32 s83, s83, s82')
        g.I('s_add_u32 s84, s83, %d' % (28 * 1024))
        for b in range(2):
            q = tq + 16 + 4 * ((2 * pp + b) & 3)
            rt = V(vRt + 2 * b, 2)
            for o in range(2):
                pos = 2 * pp + o
                for k in range(2):
                    g.I('v_pk_mul_f32 %s, %s, %s op_sel:[0,1] op_sel_hi:[1,1]' % (V(tq + 4 * o + 2 * k, 2), V(vC2 + 4 * pos + 2 * k, 2), rt))
            for o in range(2):
                a = acc2 + 8 * (2 * pp + o) + 4 * b
                for k in range(2):
                    g.I('v_pk_fma_f32 %s, %s, %s, %s op_sel_hi:[1,0,1] neg_lo:[0,0,1] neg_hi:[0,0,1]' % (V(a + 2 * k, 2), V(a + 2 * k, 2), rt, V(tq + 4 * o + 2 * k, 2)))
            for o in range(2):
                a = acc2 + 8 * (2 * pp + o) + 4 * b
                for k in range(2):
                    g.I('v_cvt_pk_bf16_f32 %s, %s, %s' % (V(q + 2 * o + k), V(a + 2 * k), V(a + 2 * k + 1)))
            g.I('buffer_store_dwordx4 %s, %s, %s, %s offen sc1' % (V(q, 4), V(vL16), sWS, S(83 + b)), tok=tz1)
    g.I('s_xor_b32 s83, %s, 1' % S(sCg))
    g.I('s_lshl_b32 s82, %s, 3' % S(sRb))
    g.I('s_add_u32 s82, s82, s83')
    g.I('s_lshl_b32 s82, s82, 7')
    g.I('s_add_u32 s0, s82, 0x%x' % WS_Z1F)
    g.I('s_waitcnt lgkmcnt(0)')
    g.I('s_branch L_p2')
    return g


def p1q():
    g = Seg('p1q')
    P = Priv(LQ_NSLOT)
    acc, hal, vSM, vSS, vHS = 64, 160, 172, 180, 188
    vRdH = vTr + 4
    wtok = {}

    def accr(u, hp, b):
        return acc + 32 * u + 8 * hp + 4 * b

    def w_issue(s):
        t = wtok[s] = Tok('W%d' % s)
        out = [mk('s_mul_i32 s82, %s, 1536' % S(sWd))]
        for e in range(2):
            out.append(mk('s_add_u32 m0, %s, %d' % (S(sWm), (s % 3) * 24576 + e * 12288)))
            if e:
                out.append(mk('s_add_u32 s82, s82, %d' % (32 * 3072)))
            for u in range(3):
                out.append(mk('buffer_load_dwordx4 %s, %s, s82 offen offset:%d lds' % (V(vWa), sW, 1024 * u), tok=t))
        out += [mk('s_add_u32 %s, %s, 128' % (S(sWd), S(sWd))), mk('s_and_b32 %s, %s, 0x380' % (S(sWd), S(sWd)))]
        return out

    def x_issue(s):
        return P.issue(s) + [mk(x) for x in K1_NEXT]

    g.I('s_lshl_b32 %s, %s, 14' % (S(sPriv), S(sWave)))
    g.I('s_add_u32 %s, %s, %d' % (S(sPriv), S(sPriv), LQ_PRIV))
    g.I('s_mul_i32 %s, %s, 3072' % (S(sWm), S(sWave)))
    g.I('v_lshrrev_b32 v31, 3, v0')
    g.I('v_bfe_u32 v29, v0, 4, 1')
    g.I('s_and_b32 s82, %s, 1' % S(sWave))
    g.I('s_lshl_b32 s82, s82, 1')
    g.I('v_or_b32 v29, s82, v29')
    g.I('v_bfe_u32 v30, v0, 1, 2')
    g.I('v_xor_b32 v29, v29, v30')
    g.I('v_lshlrev_b32 v29, 5, v29')
    g.I('v_and_b32 v30, 1, v0')
    g.I('v_lshl_or_b32 v29, v30, 4, v29')
    g.I('s_lshl_b32 s82, %s, 3' % S(sWave))
    g.I('v_add_u32 v30, s82, v31')
    g.I('v_mul_u32_u24 v30, 3072, v30')
    g.I('s_lshl_b32 s82, %s, 7' % S(sCg))
    g.I('v_add3_u32 %s, v30, v29, s82' % V(vWa))
    hreg = [13, 14, 15, 22]
    g.I('s_lshl_b32 s84, %s, 17' % S(sRb))
    g.I('s_sub_u32 s84, s84, 16384')
    for t2 in range(2):
        g.I('s_lshl_b32 s82, %s, 8' % S(sWave))
        g.I('s_add_u32 s82, s82, %s' % S(sK1))
        if t2:
            g.I('s_add_u32 s82, s82, 128')
        g.I('s_and_b32 s82, s82, 0x380')
        g.I('s_add_u32 s82, s82, s84')
        if t2:
            g.I('s_sub_u32 s82, s82, 2048')
        for q in range(2):
            g.I('v_add_u32 %s, s82, %s' % (V(hreg[2 * t2 + q]), V(vXa + q)))
    srd_first(g, 50, 51, 0x180000, None)
    g.I('s_mov_b32 %s, %s' % (S(sWd), S(sK1)))
    g.extend(x_issue(0))
    g.extend(w_issue(0))
    th = Tok('halo')
    g.I('s_mov_b32 s8, s48\ns_mov_b32 s9, s49\ns_mov_b32 s10, 0x200000\ns_mov_b32 s11, 0x20000')
    g.I('s_lshl_b32 s83, %s, 12' % S(sWave))
    g.I('s_add_u32 m0, s83, %d' % LQ_HALO)
    for t in range(4):
        g.I('buffer_load_dwordx4 %s, %s, 0 offen offset:%d lds' % (V(hreg[t]), sX, 1024 * t), tok=th)
    rest = setup_rest()
    rest += ['v_lshrrev_b32 v30, 4, v0', 'v_mul_u32_u24 v31, 3072, v30', 'v_bfe_u32 v29, v0, 2, 2', 'v_lshl_add_u32 v31, v29, 7, v31',
             'v_and_b32 v29, 3, v0', 'v_lshl_add_u32 v31, v29, 3, v31', 'v_bfe_u32 v29, v0, 3, 2', 'v_xor_b32 v29, %s, v29' % S(sWave),
             'v_lshl_add_u32 %s, v29, 5, v31' % V(vTr)]
    for hp in range(1, 4):
        rest.append('v_xor_b32 %s, %d, %s' % (V(vTr + hp), hp << 5, V(vTr)))
    rest += ['s_sub_u32 s84, %d, %s' % (LQ_HALO, S(sPriv)), 'v_add_u32 %s, s84, %s' % (V(vRdH), V(vRd0)),
             'v_add_u32 %s, s84, %s' % (V(vRdH + 1), V(vRd1))]
    rest += ['v_lshrrev_b32 v29, 3, v0', 'v_lshlrev_b32 v29, 11, v29', 'v_and_b32 v30, 7, v0', 'v_lshl_add_u32 v29, v30, 4, v29',
             's_lshl_b32 s84, %s, 12' % S(sWave), 's_add_u32 s84, s84, %d' % LQ_HALO, 'v_add_u32 v31, s84, v29']
    m, left = spread([mk(x) for x in rest], x_issue(1) + w_issue(1), vgap=60, start=opt('st1', 100))
    g.extend(m + left)
    g.extend(tag_publish())
    tone = Tok('ones')
    g.wait(th)
    g.I('s_mov_b64 exec, 0xffff')
    g.I('ds_write_b128 v31, %s' % V(vOnes, 4), tok=tone)
    g.I('s_mov_b64 exec, -1')

    hq = [V(192, 4), V(196, 4)]
    order = [(i, hp, u) for i in range(14) for hp in range(4) for u in range(3)]
    order += [(i, 0, u) for i in (14, 15) for u in range(3)] + [(i, hp, u) for i in (14, 15) for hp in range(1, 4) for u in range(3)]
    us = []
    hread = []
    for i, hp, u in order:
        s, e = i >> 1, i & 1
        k = 3 * hp + u
        off = (s % 3) * 24576 + e * 12288 + u * 1024
        rds = ['ds_read_b64_tr_b16 %%s, %s offset:%d' % (V(vTr + hp), off + 512 * h) for h in range(2)]
        ms = []
        for b in range(2):
            d = V(accr(u, hp, b), 4)
            c = d if i else '0'
            ms.append(mfma(d, '%B', xreg(i, b), c) if u < 2 else mfma(d, xreg(i, b), '%B', c))
        if hp == 0:
            d = V(hal + 4 * u, 4)
            c = d if i else '0'
            ms.append(mfma(d, '%B', hq[e], c) if u < 2 else mfma(d, hq[e], '%B', c))
        ks = []
        if i < 14 and 3 <= k < 8:
            ks = [k - 3]
        if i >= 14 and hp == 0:
            ks = [(0, 1), (2, 3), (4,)][u]
        for kk in ks:
            if kk < 2:
                d = V(vSS + 4 * kk, 4)
                ms.append(mfma(d, xreg(i, kk), xreg(i, kk), d if i else '0'))
            elif kk < 4:
                d = V(vSM + 4 * (kk - 2), 4)
                ms.append(mfma(d, xreg(i, kk - 2), V(vOnes, 4), d if i else '0'))
            else:
                d = V(vHS, 4)
                ms.append(mfma(d, hq[e], hq[e], d if i else '0'))
        if i < 14 and k == 8:
            hread.append((len(us), 'ds_read_b128 %s, %s offset:%d' % (hq[e], V(vRdH + e), 2048 * ((i + 2) >> 1))))
        us.append((s, rds, ms))
    bgs = {}
    SQ0 = opt('sq0', 2)

    def openq(s):
        it = [mkwait(wtok[s], P.dma[s], *([tone] if s == 0 else []))] + stamp_ins('o%d' % s) + [mk('s_barrier')]
        it += P.read(s)
        if s == 0:
            it += [mk('ds_read_b128 %s, %s' % (hq[e], V(vRdH + e))) for e in range(2)]
        bg = []
        if s == 0:
            bg += w_issue(2)
        if s >= 2 and s + 1 < 8:
            bg += w_issue(s + 1)
        if s > SQ0:
            bg += P.read(8 + s - SQ0 - 1)
        if s + 2 < 8:
            bg += x_issue(s + 2)
        if s >= SQ0:
            bg += P.issue(8 + s - SQ0)
        if s == 3:
            bg.append(mk(TAG_FETCH))
        bgs[s] = bg
        return it

    pre, G, first, opened = build_pass(us, openq)
    for u, t in hread:
        G.place([t], first[u] + 1)
    gi = 0
    for s in range(8):
        gi = G.place(bgs[s], max(gi, opened[s] + 2), vspace=opt('vsq', 4))
    nS = 8 + 8 - SQ0
    CS = LQ_MISC
    vR, vRM = 200, 212
    vCv = 224
    vCq = 228
    G.place(['v_lshrrev_b32 v30, 4, v0', 's_lshl_b32 s84, %s, 6' % S(sWave), 's_add_u32 s84, s84, %d' % CS, 'v_lshl_add_u32 v13, v30, 4, s84',
             'v_and_b32 v29, 15, v0', 'v_lshl_add_u32 v14, v29, 2, s84', 'v_mul_u32_u24 v31, 80, v30', 'v_lshlrev_b32 v30, 6, v30'], first[13 * 12])
    tcs = Tok('cs')
    it = [[mk('s_mov_b32 exec_lo, 0x00010001'), mk('s_mov_b32 exec_hi, 0x00010001'), mk('ds_write_b128 v13, %s' % V(hal, 4), tok=tcs),
           mk('ds_write_b128 v13, %s offset:256' % V(hal + 4, 4), tok=tcs), mk('s_mov_b64 exec, 0xffff'),
           mk('ds_write_b32 v14, %s offset:512' % V(hal + 8), tok=tcs), mk('s_mov_b64 exec, -1')]]
    gi = first[14 * 12 + 6] + 3
    G.put(gi, it[0])
    it = []
    for b in range(2):
        for r in range(4):
            it.append('ds_bpermute_b32 %s, v31, %s offset:%d' % (V(vR + 4 * b + r), V(vSS + 4 * b + r), 4 * r))
    for r in range(4):
        it.append('ds_bpermute_b32 %s, v31, %s offset:%d' % (V(vR + 8 + r), V(vHS + r), 4 * r))
    for r in range(4):
        it.append('ds_bpermute_b32 %s, v30, %s' % (V(vRM + 8 + r), V(vHS + r)))
    for i in range(8):
        it.append('v_mov_b32 %s, %s' % (V(vRM + i), V(vSM + i)))
    it += [mkwait(tcs), mk('s_barrier')]
    for hp in range(4):
        if hp:
            it += ['v_xor_b32 v29, %d, v13' % (hp << 6), 'v_xor_b32 v15, %d, v14' % (hp << 6)]
        it.append('ds_read_b128 %s, %s offset:256' % (V(vCq + 4 * hp, 4), 'v29' if hp else 'v13'))
        it.append('ds_read_b32 %s, %s offset:512' % (V(vCv + hp), 'v15' if hp else 'v14'))
    G.place(it, gi + 1, cap=12)
    g.extend(pre)
    G.emit(g)
    stamp(g, 'p1e')
    vCq0 = vB
    for hp in range(4):
        if hp:
            g.I('v_xor_b32 v29, %d, v13' % (hp << 6))
        g.I('ds_read_b128 %s, %s' % (V(vCq0 + 4 * hp, 4), 'v29' if hp else 'v13'))
    row_stats(g, vRM, vR, 12)
    vRt = 176
    g.I('v_and_b32 v30, 15, v0')
    g.I('v_lshrrev_b32 v31, 2, v30')
    g.I('v_lshl_add_u32 v31, v31, 4, v30')
    g.I('v_lshlrev_b32 v31, 2, v31')
    for b in range(3):
        g.extend(to_lane_layout(vR + 4 * b, vRt + 2 * b, 31, 182, 183))
        g.extend(to_lane_layout(vRM + 4 * b, vRt + 2 * b + 1, 31, 184, 185))
    tag_check(g)
    g.I('v_mov_b32 %s, %s' % (V(vTag), S(sTag)))
    tm = 48
    main = []

    def fold_dp(a, cs4, b):
        rt = V(vRt + 2 * b, 2)
        for k in range(2):
            main.append('v_pk_mul_f32 %s, %s, %s op_sel:[0,1] op_sel_hi:[1,1]' % (V(tm + 2 * k, 2), V(cs4 + 2 * k, 2), rt))
        for k in range(2):
            main.append('v_pk_fma_f32 %s, %s, %s, %s op_sel_hi:[1,0,1] neg_lo:[0,0,1] neg_hi:[0,0,1]' % (V(a + 2 * k, 2), V(a + 2 * k, 2), rt, V(tm + 2 * k, 2)))

    def fold_d(a, hp, b):
        sel = 'op_sel_hi:[1,0]' if hp % 2 == 0 else 'op_sel:[0,1] op_sel_hi:[1,1]'
        for k in range(2):
            main.append('v_pk_mul_f32 %s, %s, %s %s' % (V(tm + 4 + 2 * k, 2), V(vRM + 4 * b + 2 * k, 2), V(vCv + (hp & ~1), 2), sel))
        for k in range(2):
            main.append('v_pk_fma_f32 %s, %s, %s, %s neg_lo:[0,0,1] neg_hi:[0,0,1]' % (V(a + 2 * k, 2), V(a + 2 * k, 2), V(vR + 4 * b + 2 * k, 2), V(tm + 4 + 2 * k, 2)))

    def pack(dst, a):
        for k in range(2):
            main.append('v_cvt_pk_bf16_f32 %s, %s, %s' % (V(dst + k), V(a + 2 * k), V(a + 2 * k + 1)))

    seq = list(range(nS, 16)) + [20, 21, 22, 23, 16, 17, 18, 19]
    prog = [('r', nS - 1)]
    for k, n in enumerate(seq):
        if k >= 3:
            prog.append(('r', seq[k - 3]))
        prog.append(('i', n))
    prog += [('r', n) for n in seq[-3:]]
    VP = 16

    def take(k, allow_v):
        out = []
        while prog and k > 0:
            a, n = prog[0]
            if a == 'r' and VP <= n < 20 and not allow_v:
                break
            prog.pop(0)
            out += P.read(n) if a == 'r' else P.issue(n)
            if a == 'i':
                k -= 1
        return out

    for hp in range(4):
        for b in range(2):
            fold_d(accr(2, hp, b), hp, b)
    fold_d(hal + 8, 0, 2)
    fold_dp(hal + 4, vCq, 2)
    pack(hal + 4, hal + 4)
    pack(hal + 8, hal + 8)
    for hp in range(4):
        for b in range(2):
            fold_dp(accr(1, hp, b), vCq + 4 * hp, b)
        for u in (1, 2):
            a = accr(u, hp, 0)
            main.append('v_cvt_pk_bf16_f32 %s, %s, %s' % (V(a + 3), V(a + 2), V(a + 3)))
            main.append('v_cvt_pk_bf16_f32 %s, %s, %s' % (V(a + 2), V(a), V(a + 1)))
            pack(a + 4, a + 4)
    m, left = spread([mk(x) for x in main], take(2, False), vgap=75)
    g.extend(m + left)
    main = []
    g.I('s_barrier')
    g.I('s_lshl_b32 s84, %s, 12' % S(sWave))
    g.I('s_lshl_b32 s85, %s, 10' % S(sWave))
    g.I('s_add_u32 s84, s84, s85')
    g.I('v_lshlrev_b32 v29, 3, v0')
    g.I('v_add_u32 v13, s84, v29')
    g.I('v_add_u32 v14, s85, v29')
    tx = Tok('xch')
    g.I('ds_write_b64 v14, %s' % V(hal + 4, 2), tok=tx)
    g.I('ds_write_b64 v14, %s offset:512' % V(hal + 8, 2), tok=tx)
    for hp in range(4):
        if hp:
            g.I('v_xor_b32 %s, %d, v13' % (V(vTr + hp), hp << 10))
        ad = V(vTr + hp) if hp else 'v13'
        g.I('ds_write_b64 %s, %s offset:4096' % (ad, V(accr(1, hp, 0) + 4, 2)), tok=tx)
        g.I('ds_write_b64 %s, %s offset:4608' % (ad, V(accr(2, hp, 0) + 4, 2)), tok=tx)
    for hp in range(4):
        for b in range(2):
            fold_dp(accr(0, hp, b), vCq0 + 4 * hp, b)
        a = accr(0, hp, 0)
        pack(a, a)
        pack(a + 2, a + 4)
    vMb = 192
    main += ['v_and_b32 v29, 14, v0', 'v_bfe_u32 v30, v0, 4, 2', 'v_lshlrev_b32 v30, 2, v30', 'v_sub_u32 v29, v29, v30',
             'v_mov_b32 v30, 0x%x' % f2u(-1e30)]
    for k, (cmp_, c) in enumerate((('ge', -2), ('ge', 0), ('le', 0), ('le', 2))):
        main += ['v_cmp_%s_i32 vcc, %d, v29' % (cmp_, c), 'v_cndmask_b32 %s, v30, 0, vcc' % V(vMb + k)]
    main += ['s_lshl_b32 s84, %s, 2' % S(sRb), 's_or_b32 s84, s84, %s' % S(sWave)]
    m, left = spread([mk(x) for x in main], take(1, False), vgap=75)
    g.extend(m + left)
    g.I('s_cmp_eq_u32 s84, 0')
    g.I('s_cselect_b64 vcc, -1, 0')
    g.I('v_cndmask_b32 %s, %s, v30, vcc' % (V(vMb + 4), V(vMb)))
    g.I('v_cndmask_b32 %s, %s, v30, vcc' % (V(vMb + 5), V(vMb + 1)))
    g.I('v_cndmask_b32 %s, 1.0, 0, %s' % (V(vMb + 6), S(sPar, 2)))
    g.I('v_cndmask_b32 %s, 0, 1.0, %s' % (V(vMb + 7), S(sPar, 2)))
    g.I('s_mov_b32 s84, 0x%x' % f2u(0.25 * math.log2(math.e)))
    g.I('s_mov_b32 s85, s84')
    g.wait(tx)
    g.I('s_barrier')
    stamp(g, 'att')
    for hp in range(4):
        ad = V(vTr + hp) if hp else 'v13'
        g.I('ds_read_b64 %s, %s' % (V(accr(1, hp, 0), 2), ad))
        g.I('ds_read_b64 %s, %s offset:512' % (V(accr(2, hp, 0), 2), ad))
    to = Tok('o')
    vO = 160
    for b in (1, 0):
        T = [vB + 8 * hp for hp in range(4)]
        U = [200 + 6 * hp for hp in range(4)]
        st = [[] for _ in range(20)]
        for hp in range(4):
            t, u_ = T[hp], U[hp]
            kq, q = accr(1, hp, 0), accr(0, hp, 0) + 2 * b
            st[0].append('v_mfma_f32_16x16x16_bf16 %s, %s, %s, 0' % (V(t, 4), V(kq + 2 * b, 2), V(q, 2)))
            st[0].append('v_mfma_f32_16x16x16_bf16 %s, %s, %s, 0' % (V(t + 4, 4), V(kq + 2 * b + 2, 2), V(q, 2)))
            for k in range(4):
                st[1].append('v_cndmask_b32 %s, %s, %s, %s' % (V(u_ + k), V(t + 2 * k), V(t + 2 * k + 1), S(sPar, 2)))
            m01 = V(vMb + 4, 2) if b == 0 else V(vMb, 2)
            st[2].append('v_pk_fma_f32 %s, %s, s[84:85], %s' % (V(u_, 2), V(u_, 2), m01))
            st[2].append('v_pk_fma_f32 %s, %s, s[84:85], %s' % (V(u_ + 2, 2), V(u_ + 2, 2), V(vMb + 2, 2)))
            st[3].append('v_max3_f32 %s, %s, %s, %s' % (V(u_ + 4), V(u_), V(u_ + 1), V(u_ + 2)))
            st[4].append('v_max_f32 %s, %s, %s' % (V(u_ + 4), V(u_ + 4), V(u_ + 3)))
            st[5].append('v_mov_b32 %s, %s' % (V(u_ + 5), V(u_ + 4)))
            st[6].append('v_permlane32_swap_b32 %s, %s' % (V(u_ + 4), V(u_ + 5)))
            st[7].append('v_max_f32 %s, %s, %s' % (V(u_ + 4), V(u_ + 4), V(u_ + 5)))
            st[7].append('v_mov_b32 %s, %s' % (V(u_ + 5), V(u_ + 4)))
            st[8].append('v_permlane16_swap_b32 %s, %s' % (V(u_ + 4), V(u_ + 5)))
            st[9].append('v_max_f32 %s, %s, %s' % (V(u_ + 4), V(u_ + 4), V(u_ + 5)))
            for k in range(2):
                st[10].append('v_pk_add_f32 %s, %s, %s op_sel_hi:[1,0] neg_lo:[0,1] neg_hi:[0,1]' % (V(u_ + 2 * k, 2), V(u_ + 2 * k, 2), V(u_ + 4, 2)))
            for k in range(4):
                st[11].append('v_exp_f32 %s, %s' % (V(u_ + k), V(u_ + k)))
            st[12].append('v_pk_add_f32 %s, %s, %s' % (V(u_ + 4, 2), V(u_, 2), V(u_ + 2, 2)))
            st[13].append('v_add_f32 %s, %s, %s' % (V(u_ + 4), V(u_ + 4), V(u_ + 5)))
            st[13].append('v_mov_b32 %s, %s' % (V(u_ + 5), V(u_ + 4)))
            st[14].append('v_permlane32_swap_b32 %s, %s' % (V(u_ + 4), V(u_ + 5)))
            st[15].append('v_add_f32 %s, %s, %s' % (V(u_ + 4), V(u_ + 4), V(u_ + 5)))
            st[15].append('v_mov_b32 %s, %s' % (V(u_ + 5), V(u_ + 4)))
            st[16].append('v_permlane16_swap_b32 %s, %s' % (V(u_ + 4), V(u_ + 5)))
            st[17].append('v_add_f32 %s, %s, %s' % (V(u_ + 4), V(u_ + 4), V(u_ + 5)))
            st[18].append('v_rcp_f32 %s, %s' % (V(u_ + 4), V(u_ + 4)))
            st[19].append('v_pk_mul_f32 %s, %s, %s op_sel_hi:[1,0]' % (V(u_ + 4, 2), V(vMb + 6, 2), V(u_ + 4, 2)))
        main = [x for s_ in st for x in s_]
        for hp in range(4):
            t, u_ = T[hp], U[hp]
            for k in range(4):
                sel = 'op_sel_hi:[1,0]' if k % 2 == 0 else 'op_sel:[0,1] op_sel_hi:[1,1]'
                main.append('v_pk_mul_f32 %s, %s, %s %s' % (V(t + 2 * k, 2), V(u_ + 4, 2), V(u_ + (k & ~1), 2), sel))
        for hp in range(4):
            t, u_ = T[hp], U[hp]
            for k in range(4):
                main.append('v_cvt_pk_bf16_f32 %s, %s, %s' % (V(u_ + k), V(t + 2 * k), V(t + 2 * k + 1)))
        for hp in range(4):
            main.append(mfma(V(T[hp], 4), V(accr(2, hp, 0) + 2 * b, 4), V(U[hp], 4), '0'))
        m, left = spread([mk(x) for x in main], take(3, False), vgap=75)
        g.extend(m + left)
        for hp in range(4):
            for k in range(2):
                g.I('v_cvt_pk_bf16_f32 %s, %s, %s' % (V(vO + 8 * b + 2 * hp + k), V(T[hp] + 2 * k), V(T[hp] + 2 * k + 1)))
    lsk = lab('L_osw')
    g.I('s_bitcmp1_b32 %s, 0' % S(sWave))
    g.I('s_cbranch_scc0 %s' % lsk)
    for b in range(2):
        for pr in range(2):
            for k in range(2):
                g.I('v_swap_b32 %s, %s' % (V(vO + 8 * b + 4 * pr + k), V(vO + 8 * b + 4 * pr + 2 + k)))
    g.label(lsk)
    g.I('s_lshl_b32 s82, %s, 3' % S(sRb))
    g.I('s_lshl_b32 s83, %s, 1' % S(sWave))
    g.I('s_add_u32 s82, s82, s83')
    g.I('s_lshl_b32 s82, s82, 4')
    g.I('s_lshl_b32 s83, %s, 1' % S(sCg))
    g.I('s_add_u32 s82, s82, s83')
    g.I('s_lshr_b32 s83, %s, 1' % S(sWave))
    g.I('s_add_u32 s82, s82, s83')
    g.I('s_lshl_b32 s82, s82, 10')
    g.I('s_add_u32 s82, s82, 0x%x' % WS_O)
    g.I('s_xor_b32 s83, s82, 1024')
    g.I('s_add_u32 s84, s82, 16384')
    g.I('s_add_u32 s85, s83, 16384')
    for b in range(2):
        for pr in range(2):
            g.I('buffer_store_dwordx4 %s, %s, %s, %s offen sc1' % (V(vO + 8 * b + 4 * pr, 4), V(vL16), sWS, S(82 + 2 * b + pr)), tok=to)
    stamp(g, 'ost')
    g.extend(take(99, True))
    assert not prog
    g.I('s_lshl_b32 s82, %s, 3' % S(sRb))
    g.I('s_add_u32 s82, s82, %s' % S(sCg))
    g.I('s_lshl_b32 s82, s82, 7')
    g.I('s_add_u32 s0, s82, 0x%x' % WS_OF)
    g.I('s_waitcnt lgkmcnt(0)')
    return g


def p23():
    g = Seg('p23')
    g.label('L_p2')
    g.I('s_nop 7')
    stamp(g, 'p2')
    acc = 64
    vL16b = 4
    bufs = [A(192 + 4 * i, 4) for i in range(16)]
    NBUF = 16
    LA = opt('la', 14)
    g.I('s_lshl_b32 s82, %s, 2' % S(sJ))
    g.I('s_lshr_b32 s83, 0x76443200, s82')
    g.I('s_and_b32 s83, s83, 15')
    g.I('s_lshr_b32 s84, 0x77543310, s82')
    g.I('s_and_b32 s84, s84, 15')
    g.I('v_mov_b32 v5, s83')
    g.I('v_mov_b32 v6, s84')
    g.I('v_cndmask_b32 v5, v5, v6, %s' % S(sPar, 2))
    g.I('v_lshlrev_b32 v5, 7, v5')
    g.I('v_bfe_u32 v6, v0, 1, 2')
    g.I('v_lshl_add_u32 v6, v6, 10, v5')
    g.I('s_lshl_b32 s82, %s, 12' % S(sWave))
    g.I('s_add_u32 s82, s82, 0x%x' % WS_ZF)
    ld = ['buffer_load_dwordx4 v[8:11], v6, %s, s82 offen sc1' % sWS]
    g.I(ld[0])
    g.I('v_add_u32 %s, 4096, %s' % (V(vL16b), V(vL16)))
    g.I('s_lshl_b32 s83, %s, 2' % S(sWave))
    g.I('s_add_u32 s0, s0, s83')
    g.I('s_mul_i32 s85, %s, %d' % (S(sWave), 16 * 56))
    g.I('s_mul_i32 s84, %s, 7' % S(sJ))
    g.I('s_add_u32 s85, s85, s84')
    g.I('s_lshl_b32 s85, s85, 10')
    g.I('s_add_u32 %s, s85, 0x%x' % (S(sWm), WS_Z2N))
    g.I('s_lshl_b32 %s, %s, 14' % (S(sPriv), S(sWave)))
    g.I('s_add_u32 %s, %s, %d' % (S(sPriv), S(sPriv), L3_PRIV))
    g.extend(poll_items([ld], [8, 9, 10, 11], 13))
    g.I('buffer_store_dword %s, off, %s, s0 sc1' % (V(vTag), sWS))
    stamp(g, 'p2go')

    def bload(u):
        i, c = divmod(u, 7)
        out = []
        if c == 0:
            if i & 1 == 0:
                out += ['s_mul_i32 %s, %s, %d' % (S(sWd), S(sRho2), 2 * 56 * 1024), 's_add_u32 %s, %s, %s' % (S(sWd), S(sWd), S(sWm))]
            else:
                out += ['s_add_u32 %s, %s, %d' % (S(sWd), S(sWd), 56 * 1024), 's_add_u32 %s, %s, 1' % (S(sRho2), S(sRho2)),
                        's_and_b32 %s, %s, 7' % (S(sRho2), S(sRho2))]
        out.append('buffer_load_dwordx4 %s, %s, %s, %s offen offset:%d sc1' % (bufs[u % NBUF], V(vL16 if c < 4 else vL16b), sWS, S(sWd), 1024 * (c & 3)))
        return out

    for u in range(LA):
        g.I('\n'.join(bload(u)))
    G = Gaps()
    for u in range(112):
        i, c = divmod(u, 7)
        order = range(4) if i < 15 else (1, 2, 3, 0)
        for bb in order:
            d = V(acc + 16 * c + 4 * bb, 4)
            G.add(mfma(d, bufs[u % NBUF], sreg(i, bb), d if i else '0'))
        G.load[4 * u - 1] = G.load.get(4 * u - 1, 0) + 4
        for x in stamp_ins('u%d' % u):
            G.before(4 * u, x)
    for u in range(LA, 112):
        G.place(bload(u), 4 * (u - LA), cap=8)
    vZ = 176
    vZf = 32
    G.place(['s_lshl_b32 s83, %s, 2' % S(sTb), 's_add_u32 s83, s83, %s' % S(sWave), 's_lshl_b32 s84, s83, 5', 'v_and_b32 v7, 15, v0',
             'v_lshlrev_b32 v7, 1, v7', 'buffer_load_ushort v12, v7, %s, s84 offen' % sB], 8)
    vWd, vWt, vOa, vHa = 18, 22, 60, 190
    pre = ['v_lshrrev_b32 v13, 3, v0', 'v_bfe_u32 v14, v0, 1, 2', 'v_lshrrev_b32 v15, 4, v0', 'v_xor_b32 v14, v14, v15',
           'v_lshlrev_b32 v14, 5, v14', 'v_and_b32 v15, 1, v0', 'v_lshl_or_b32 v14, v15, 4, v14',
           's_lshl_b32 s84, %s, 7' % S(sJ), 'v_lshl_add_u32 v14, v13, 10, v14', 'v_add_u32 %s, s84, v14' % V(vWd)]
    for q in range(1, 4):
        pre.append('v_add_u32 %s, %d, %s' % (V(vWd + q), 7168 * q, V(vWd)))
    pre += ['v_lshrrev_b32 v13, 2, v0', 'v_lshlrev_b32 v14, 7, v13', 'v_and_b32 v15, 3, v0', 'v_lshl_add_u32 v14, v15, 3, v14',
            'v_bfe_u32 v13, v0, 3, 2', 'v_lshl_add_u32 v14, v13, 5, v14', 'v_add_u32 %s, %s, v14' % (V(vWt), S(sPriv))]
    for c in range(1, 4):
        pre.append('v_xor_b32 %s, %d, %s' % (V(vWt + c), c << 5, V(vWt)))
    pre += ['s_lshl_b32 s83, %s, 1' % S(sJl), 's_add_u32 s83, s83, %s' % S(sTbl), ['s_cmp_ge_u32 s83, 7', 's_cselect_b32 s84, 7, 0'],
            's_sub_u32 %s, s83, s84' % S(sRho3), 's_add_u32 %s, %s, %s' % (S(sJl), S(sJl), S(sTbl)),
            's_and_b32 %s, %s, 3' % (S(sJl), S(sJl)), 's_lshl_b32 s83, %s, 2' % S(sTb)]
    for bb in range(4):
        pre += ['s_add_u32 s84, %s, %d' % (S(sWave), bb), 's_and_b32 s84, s84, 3', 's_add_u32 %s, s84, s83' % S(sFr + bb),
                's_lshl_b32 s84, %s, 14' % S(sFr + bb), 'v_add_u32 %s, s84, %s' % (V(vOa + bb), V(vL16))]
    pre += ['v_and_b32 v6, 1, v0', 'v_lshlrev_b32 v6, 7, v6', 'v_mov_b32 v17, %s' % S(sGE + 1)]
    G.place([[mk(y) for y in x] if isinstance(x, list) else x for x in pre], 16)
    UZ = opt('uz', 40)
    z1ld = ['s_lshr_b32 s83, %s, 1' % S(sTb), 's_lshl_b32 s83, s83, 10', 's_add_u32 s83, s83, 0x%x' % WS_Z1F,
            'buffer_load_dwordx4 v[8:11], v5, %s, s83 offen sc1' % sWS]
    G.place(z1ld, 4 * UZ)
    gi = G.place(poll_items([z1ld], [8, 9, 10, 11], 13), 4 * (UZ + 10))
    it = ['s_mul_i32 s83, %s, %d' % (S(sFr), 28 * 1024), 's_add_u32 s83, s83, 0x%x' % WS_Z1R, 's_mul_i32 s84, %s, %d' % (S(sJ), 7 * 512),
          's_and_b32 s85, s84, 512', 's_sub_u32 s84, s84, s85', 's_add_u32 s83, s83, s84', 's_lshr_b32 s85, s85, 6',
          's_add_u32 s82, s83, s85',
          's_lshl_b32 s84, s85, 7', 's_add_u32 s83, s83, s84', 's_xor_b32 s85, s85, 8', 's_add_u32 s83, s83, s85']
    for c in range(7):
        it.append('buffer_load_dwordx2 %s, %s, %s, s%d offen offset:%d sc1' % (V(vZ + 2 * c, 2), V(vL16), sWS, 82 + (c & 1), 1024 * (c >> 1)))
    gi = G.place(it, gi + 1, vspace=2)
    gl = []
    for c2 in range(14):
        y0, y1, t0, t1 = vZf + 2 * c2, vZf + 2 * c2 + 1, 13 + 2 * (c2 & 1), 14 + 2 * (c2 & 1)
        gl += ['v_lshlrev_b32 %s, 16, %s' % (V(y0), V(vZ + c2)), 'v_and_b32 %s, 0xffff0000, %s' % (V(y1), V(vZ + c2))]
        for tmpl in ('v_mul_f32 {t}, {y}, {y}', 'v_fma_f32 {t}, {t}, %s, v17' % S(sGE), 'v_mul_f32 {t}, {t}, {y}', 'v_exp_f32 {t}, {t}',
                     'v_add_f32 {t}, 1.0, {t}', 'v_rcp_f32 {t}, {t}', 'v_mul_f32 {y}, {y}, {t}'):
            for y, t in ((y0, t0), (y1, t1)):
                gl.append(tmpl.format(t=V(t), y=V(y)))
    gi = G.place(gl, gi + opt('zlat', 40), cap=opt('gcap', 8))
    print('gelu ends at gap', gi, 'of', len(G.m), file=sys.stderr)

    wd, wr = {}, {}

    def kidx(k):
        if k < 4:
            return ['s_add_u32 s82, %s, %d' % (S(sJl), k), 's_and_b32 s82, s82, 3', 's_lshl_b32 s97, %s, 2' % S(sWave), 's_add_u32 s82, s82, s97']
        return ['s_add_u32 s82, %s, %d' % (S(sRho3), k - 4), ['s_cmp_ge_u32 s82, 7', 's_cselect_b32 s97, 7, 0'],
                's_sub_u32 s82, s82, s97', 's_mul_i32 s97, %s, 7' % S(sWave), 's_add_u32 s82, s82, s97']

    def flat(l):
        return [[mk(y) for y in x] if isinstance(x, list) else mk(x) for x in l]

    def w3_issue(k):
        out = []
        if k - 4 in wr:
            out.append(mkwait(wr[k - 4]))
        t = wd[k] = Tok('w3_%d' % k)
        out += flat(kidx(k))
        out += [mk('s_lshl_b32 s83, s82, 15'), mk('s_add_u32 m0, %s, %d' % (S(sPriv), (k & 3) * 4096))]
        for q in range(4):
            out.append(mk('buffer_load_dwordx4 %s, %s, s83 offen offset:%d lds' % (V(vWd + q), sWO if k < 4 else sWOUT, 1024 * q), tok=t))
        return out

    def w3_read(k):
        out = [mkwait(wd[k])]
        t = wr[k] = Tok('w3r_%d' % k)
        for c in range(4):
            for h in range(2):
                out.append(mk('ds_read_b64_tr_b16 %s, %s offset:%d' % (A(16 * k + 4 * c + 2 * h, 2), V(vWt + c), (k & 3) * 4096 + 2048 * h), tok=t))
        return out

    old = ['s_lshr_b32 s83, %s, 1' % S(sTb), 's_lshl_b32 s83, s83, 2', 's_add_u32 s83, s83, %s' % S(sWave), 's_lshl_b32 s83, s83, 8',
           's_add_u32 s83, s83, 0x%x' % WS_OF, 'buffer_load_dwordx4 v[8:11], v6, %s, s83 offen sc1' % sWS]
    tail = [mk(x) for x in old]
    for k in range(3):
        tail += w3_issue(k)
    G.place(tail, 4 * (112 - LA) + 1, vspace=4, cap=12)
    tr = Tok('red')
    it = []
    for bb in range(1, 4):
        it += ['s_add_u32 s84, %s, %d' % (S(sWave), bb), 's_and_b32 s84, s84, 3', 's_mul_i32 s84, s84, 21504',
               's_add_u32 s84, s84, %d' % ((bb - 1) * 7168), 'v_add_u32 %s, s84, %s' % (V(28 + bb), V(vL16))]
    it += ['s_mul_i32 s84, %s, 21504' % S(sWave), 'v_add_u32 v7, s84, %s' % V(vL16), 'v_lshlrev_b32 v12, 16, v12']
    G.place(it, 4 * 30)
    wl = []
    for c in range(7):
        for bb in range(1, 4):
            w = mk('ds_write_b128 %s, %s offset:%d' % (V(28 + bb), V(acc + 16 * c + 4 * bb, 4), 1024 * c), tok=tr)
            gp = 4 * (105 + c) + 4 + bb
            if gp < len(G.m):
                G.put(gp, w)
            else:
                wl.append(w)
    G.emit(g)
    stamp(g, 'p2e')
    g.extend(wl)
    g.wait(tr)
    g.I('s_barrier')
    stamp(g, 'red')
    for c in range(7):
        for bb in range(1, 4):
            g.I('ds_read_b128 %s, v7 offset:%d' % (V(acc + 16 * c + 4 * bb, 4), (bb - 1) * 7168 + 1024 * c))
    th = Tok('h')
    vH = 176
    main = []
    for c in range(7):
        a = acc + 16 * c
        for k in range(2):
            main.append('v_pk_add_f32 %s, %s, %s op_sel_hi:[1,0]' % (V(a + 2 * k, 2), V(a + 2 * k, 2), V(12, 2)))
    main += ['s_mul_i32 s84, %s, 28' % S(sFr), 's_mul_i32 s85, %s, 7' % S(sJ), 's_lshr_b32 s85, s85, 1', 's_add_u32 s84, s84, s85',
             's_lshl_b32 s84, s84, 10', 's_add_u32 s84, s84, 0x%x' % WS_H]
    for c in range(7):
        a = acc + 16 * c
        for k in range(2):
            main.append('v_pk_add_f32 %s, %s, %s' % (V(a + 2 * k, 2), V(a + 2 * k, 2), V(a + 4 + 2 * k, 2)))
            main.append('v_pk_add_f32 %s, %s, %s' % (V(a + 8 + 2 * k, 2), V(a + 8 + 2 * k, 2), V(a + 12 + 2 * k, 2)))
        for k in range(2):
            main.append('v_pk_add_f32 %s, %s, %s' % (V(a + 2 * k, 2), V(a + 2 * k, 2), V(a + 8 + 2 * k, 2)))
        for k in range(2):
            main.append('v_pk_mul_f32 %s, %s, %s' % (V(a + 2 * k, 2), V(a + 2 * k, 2), V(vZf + 4 * c + 2 * k, 2)))
        for k in range(2):
            main.append('v_cvt_pk_bf16_f32 %s, %s, %s' % (V(vH + 2 * c + k), V(a + 2 * k), V(a + 2 * k + 1)))
    g.extend(main)
    lo, le = lab('L_hodd'), lab('L_hend')
    g.I('s_bitcmp1_b32 %s, 0' % S(sJ))
    g.I('s_nop 1')
    g.I('s_cbranch_scc1 %s' % lo)
    for k in range(3):
        g.I('buffer_store_dwordx4 %s, %s, %s, s84 offen offset:%d sc1' % (V(vH + 4 * k, 4), V(vL16), sWS, 1024 * k), tok=th)
    g.I('buffer_store_dwordx2 %s, %s, %s, s84 offen offset:3072 sc1' % (V(vH + 12, 2), V(vL16), sWS), tok=th)
    g.I('s_branch %s' % le)
    g.label(lo)
    g.I('buffer_store_dwordx2 %s, %s, %s, s84 offen offset:8 sc1' % (V(vH, 2), V(vL16), sWS), shadow=True)
    for k in range(3):
        g.I('buffer_store_dwordx4 %s, %s, %s, s84 offen offset:%d sc1' % (V(vH + 2 + 4 * k, 4), V(vL16), sWS, 1024 * (k + 1)), shadow=True)
    g.label(le)
    stamp(g, 'hst')
    g.I('s_barrier')
    g.extend(poll_items([old], [8, 9, 10, 11], 13))
    acc3 = 64
    obuf = [V(192 + 4 * i, 4) for i in range(16)]
    hbuf = [V(128 + 4 * i, 4) for i in range(12)] + [A(176 + 4 * i, 4) for i in range(16)]

    def oload(k):
        out = flat(kidx(k)) + [mk('s_lshl_b32 s83, s82, 10'), mk('s_add_u32 s83, s83, 0x%x' % WS_O)]
        for bb in range(4):
            out.append(mk('buffer_load_dwordx4 %s, %s, %s, s83 offen sc1' % (obuf[4 * k + bb], V(vOa + bb), sWS)))
        return out

    g.extend(oload(0))
    g.extend(w3_read(0))
    g.extend(w3_issue(3))
    g.extend(w3_read(1))
    g.extend(oload(1))
    g.extend(w3_read(2))
    g.extend(w3_issue(4))
    g.extend(flag_items([th], WS_HF, sTb, sJ))
    stamp(g, 'hfl')
    G = Gaps()
    for k in range(4):
        for bb in range(4):
            for c in range(4):
                d = V(acc3 + 16 * c + 4 * bb, 4)
                G.add(mfma(d, A(16 * k + 4 * c, 4), obuf[4 * k + bb], d if k else '0'))
    xa = ['v_and_b32 v13, 15, v0', 'v_lshlrev_b32 v13, 10, v13', 'v_bfe_u32 v14, v0, 4, 1', 'v_lshl_add_u32 v13, v14, 5, v13',
          'v_bfe_u32 v14, v0, 5, 1', 'v_lshl_add_u32 v13, v14, 4, v13', 's_lshl_b32 %s, %s, 14' % (S(sWm), S(sFr)),
          's_lshl_b32 s83, %s, 7' % S(sJ), 's_add_u32 %s, %s, s83' % (S(sWm), S(sWm))]
    ha = []
    for bb in range(4):
        ha += ['s_mul_i32 s84, %s, %d' % (S(sFr + bb), 28 * 1024), 'v_add_u32 %s, s84, %s' % (V(14 + bb), V(vL16))]
    g.extend(oload(2))
    g.extend(w3_issue(5))
    g.extend(oload(3))
    gi = G.place(w3_read(3) + w3_issue(6) + flat(xa) + flat(ha), 0, vspace=3, cap=12, end=31)
    gi = G.place(w3_read(4) + w3_issue(7) + w3_read(5) + w3_issue(8), gi, vspace=3, cap=12, end=47)
    gi = G.place(w3_read(6) + w3_issue(9) + w3_read(7) + w3_issue(10), gi, vspace=2, cap=12)
    G.emit(g)
    stamp(g, 'ome')
    g.I('buffer_load_dwordx4 v[32:35], v13, %s, %s offen' % (sX, S(sWm)))
    g.I('buffer_load_dwordx4 v[36:39], v13, %s, %s offen offset:64' % (sX, S(sWm)))
    hld = ['s_lshl_b32 s83, %s, 2' % S(sTb), 's_add_u32 s83, s83, %s' % S(sWave), 's_lshl_b32 s83, s83, 8',
           's_add_u32 s83, s83, 0x%x' % WS_HF, 'buffer_load_dwordx4 v[8:11], v6, %s, s83 offen sc1' % sWS]
    g.I('\n'.join(hld))
    for k in range(8, 11):
        g.extend(w3_read(k))
    g.extend(poll_items([hld], [8, 9, 10, 11], 12))
    stamp(g, 'hgo')

    def hload(k):
        out = flat(kidx(k)) + [mk('s_lshl_b32 s83, s82, 10'), mk('s_add_u32 s83, s83, 0x%x' % WS_H)]
        for bb in range(4):
            out.append(mk('buffer_load_dwordx4 %s, %s, %s, s83 offen sc1' % (hbuf[4 * (k - 4) + bb], V(14 + bb), sWS)))
        return out

    G = Gaps()
    for k in range(4, 11):
        for bb in (range(4) if k < 10 else (1, 2, 3, 0)):
            for c in range(4):
                d = V(acc3 + 16 * c + 4 * bb, 4)
                G.add(mfma(d, A(16 * k + 4 * c, 4), hbuf[4 * (k - 4) + bb], d))
    HL = opt('hl', 3)
    for k in range(4, 4 + HL):
        g.extend(hload(k))
    gi = 0
    for k in range(4 + HL, 11):
        gi = G.place(hload(k), max(gi, 16 * (k - 4 - HL)), vspace=3, cap=12)
    tr3 = Tok('red3')
    it = []
    for bb in range(1, 4):
        it += ['s_add_u32 s84, %s, %d' % (S(sWave), bb), 's_and_b32 s84, s84, 3', 's_mul_i32 s84, s84, 12288',
               's_add_u32 s84, s84, %d' % ((bb - 1) * 4096), 'v_add_u32 %s, s84, %s' % (V(28 + bb), V(vL16))]
    it += ['s_mul_i32 s84, %s, 12288' % S(sWave), 'v_add_u32 v7, s84, %s' % V(vL16)]
    G.place(it, gi + 1)
    wl = []
    for j, bb in enumerate((1, 2, 3)):
        for c in range(4):
            w = mk('ds_write_b128 %s, %s offset:%d' % (V(28 + bb), V(acc3 + 16 * c + 4 * bb, 4), 1024 * c), tok=tr3)
            gp = 96 + 4 * j + c + 4
            if gp < len(G.m):
                G.put(gp, w)
            else:
                wl.append(w)
    G.emit(g)
    stamp(g, 'p3e')
    g.extend(wl)
    for k in range(8):
        g.I('v_lshlrev_b32 %s, 16, %s' % (V(40 + 2 * k), V(32 + k)))
        g.I('v_and_b32 %s, 0xffff0000, %s' % (V(41 + 2 * k), V(32 + k)))
    g.wait(tr3)
    g.I('s_barrier')
    for c in range(4):
        for bb in range(1, 4):
            g.I('ds_read_b128 %s, v7 offset:%d' % (V(acc3 + 16 * c + 4 * bb, 4), (bb - 1) * 4096 + 1024 * c))
    for pr in range(2):
        for c in (2 * pr, 2 * pr + 1):
            a = acc3 + 16 * c
            for k in range(2):
                g.I('v_pk_add_f32 %s, %s, %s' % (V(a + 2 * k, 2), V(a + 2 * k, 2), V(a + 4 + 2 * k, 2)))
                g.I('v_pk_add_f32 %s, %s, %s' % (V(a + 8 + 2 * k, 2), V(a + 8 + 2 * k, 2), V(a + 12 + 2 * k, 2)))
        for c in (2 * pr, 2 * pr + 1):
            a = acc3 + 16 * c
            for k in range(2):
                g.I('v_pk_add_f32 %s, %s, %s' % (V(a + 2 * k, 2), V(a + 2 * k, 2), V(a + 8 + 2 * k, 2)))
        a0, a1 = acc3 + 32 * pr, acc3 + 32 * pr + 16
        for r in range(4):
            g.I('v_permlane16_swap_b32 %s, %s' % (V(a0 + r), V(a1 + r)))
        for k in range(4):
            src = (a0 if k < 2 else a1) + 2 * (k & 1)
            g.I('v_pk_add_f32 %s, %s, %s' % (V(src, 2), V(src, 2), V(40 + 8 * pr + 2 * k, 2)))
        for k in range(4):
            src = (a0 if k < 2 else a1) + 2 * (k & 1)
            g.I('v_cvt_pk_bf16_f32 %s, %s, %s' % (V(32 + 4 * pr + k), V(src), V(src + 1)))
        g.I('buffer_store_dwordx4 %s, v13, %s, %s offen offset:%d' % (V(32 + 4 * pr, 4), sOUT, S(sWm), 64 * pr))
    if STAMP:
        g.raw('s_memtime s[98:99]')
        g.raw('s_memrealtime s[100:101]')
        g.I('s_waitcnt lgkmcnt(0)')
        g.I('s_lshl_b32 s82, s2, 2')
        g.I('s_add_u32 s82, s82, %s' % S(sWave))
        g.I('s_lshl_b32 s82, s82, 6')
        g.I('s_add_u32 s82, s82, 0x%x' % WS_DBG)
        for i in range(8):
            g.I('v_mov_b32 %s, %s' % (V(64 + i), S(sSt + 2 * i)))
        g.I('v_mov_b32 v72, s98\nv_mov_b32 v73, s98\nv_mov_b32 v74, s100\nv_mov_b32 v75, s1')
        for i in range(76, 80):
            g.I('v_mov_b32 v%d, 0' % i)
        g.I('s_mov_b64 exec, 1')
        for i in range(4):
            g.I('buffer_store_dwordx4 %s, off, %s, s82 offset:%d' % (V(64 + 4 * i, 4), sWS, 16 * i))
    g.label('L_end')
    g.I('s_endpgm')
    return g


def main():
    out = []
    hdr = open('parallel_sum__sliding_local_dilated__mixer_gmlp__prompt.s.ref').read().split('\n')
    for l in hdr:
        if l.startswith('; @launch'):
            break
        out.append(l)
    out.append('; @launch grid=(256,1,1) block=(256,1,1) lds=%d' % LDS_BYTES)
    out.append('.amdgcn_target "amdgcn-amd-amdhsa--gfx950"\n.text\n.globl %s\n.p2align 8\n.type %s,@function\n%s:' % (KN, KN, KN))
    stats = {}
    lines, st0 = finish(prologue(), None, stats)
    out += lines
    lines, st1 = finish(p1z_head(), st0, stats)
    out += lines
    for n1, l in ((8, None), (6, 'L_p1z6')):
        if l:
            out.append(l + ':')
        lines, st = finish(p1z(n1), st1, stats)
        assert not [o for o in st.vm if o.kind != 'vst'], 'loads pending at join'
        out += lines
    out.append('L_p1q:')
    lines, st = finish(p1q(), st0, stats)
    assert not [o for o in st.vm if o.kind != 'vst']
    out += lines
    lines, st = finish(p23(), None, stats)
    out += lines
    out += tail_code
    out.append(""".section .rodata,"a"
.p2align 6
.amdhsa_kernel %s
  .amdhsa_next_free_vgpr 512
  .amdhsa_next_free_sgpr 102
  .amdhsa_accum_offset 256
  .amdhsa_group_segment_fixed_size 0
  .amdhsa_kernarg_size 88
  .amdhsa_user_sgpr_count 2
  .amdhsa_user_sgpr_kernarg_segment_ptr 1
  .amdhsa_system_sgpr_workgroup_id_x 1
.end_amdhsa_kernel""" % KN)
    fn = [a for a in sys.argv[1:] if not a.startswith('--')][0]
    open(fn, 'w').write('\n'.join(out) + '\n')
    print('stats', stats, 'lines', len(out), file=sys.stderr)


main()
```

```python
import sys, struct, math
from asmlib import *

KN = "parallel_sum__sliding_local_dilated__mixer_gmlp__prompt_kernel"
STAMP = '--stamp' in sys.argv


def opt(name, default):
    for a in sys.argv:
        if a.startswith('--%s=' % name):
            return type(default)(a.split('=')[1])
    return default


WS_ZF, WS_Z1F, WS_OF, WS_HF = 0x4000, 0x8000, 0xC000, 0x10000
WS_STA, WS_STB = 0x20000, 0x60000
WS_Z2N, WS_Z1R, WS_O, WS_H = 0x100000, 0x500000, 0x900000, 0xB00000
WS_DBG = 0xF00000
WS_SIZE = 0x1000000
LZ_MISC, LZ_PRIV, LZ_NSLOT = 65536, 73728, 5
LQ_HALO, LQ_MISC, LQ_PRIV, LQ_NSLOT = 73728, 90112, 98304, 4
L3_PRIV = 98304
LDS_BYTES = 163840
MAPM = opt('mapm', 1)
QHELP = opt('qh', 1) and MAPM
ROT2 = opt('rot2', 1) and QHELP
W3AT = opt('w3at', 'att')
NJ = opt('nj', 4)
NT = 32 // NJ
TCH = [189]
PHI = 0x9E3779B9
SPIN = 1 << 15


def f2u(x):
    return struct.unpack('<I', struct.pack('<f', x))[0]


def V(i, n=1):
    return 'v%d' % i if n == 1 else 'v[%d:%d]' % (i, i + n - 1)


def A(i, n=1):
    return 'a%d' % i if n == 1 else 'a[%d:%d]' % (i, i + n - 1)


def S(i, n=1):
    return 's%d' % i if n == 1 else 's[%d:%d]' % (i, i + n - 1)


sXw, sX, sW, sS, sWS, sWO, sWOUT, sOUT, sB, sDBG = (S(i, 4) for i in (4, 8, 12, 16, 20, 24, 28, 32, 36, 40))
sWave, sRb, sCg, sRbl = 44, 45, 46, 47
sDA, sDB = 64, 66
sTbl, sRho3 = 68, 69
sK1 = 72
K1_NEXT = ['s_add_u32 s72, s72, 128', 's_and_b32 s72, s72, 0x380']
sTb, sJ, sK2, sTag, sWm, sWd, sRho2, sPriv = 70, 71, 72, 73, 74, 75, 76, 77
sFr = 78
sLN = 86
sLN2 = 88
sGE = 90
sPar = 92
sB2 = 94
sCnt = 96
sAcc = 98
sSt1, sSt2 = 100, 101
sJl = 3
sSt = 48

vLane, vL16, vRd0, vRd1 = 0, 1, 2, 3
vXa, vSa, vWa, vTr = 4, 8, 12, 16
vOnes, vTag = 24, 28
vB = 32
NB = 8


def xreg(i, b):
    return A(128 + 8 * i + 4 * b, 4)


def sreg(i, bb):
    if i < 8:
        return A(16 * i + 4 * bb, 4)
    if i < 12:
        return V(192 + 16 * (i - 8) + 4 * bb, 4)
    return A(128 + 16 * (i - 12) + 4 * bb, 4)


def mfma(d, a, b, c):
    return 'v_mfma_f32_16x16x32_bf16 %s, %s, %s, %s' % (d, a, b, c)


SLIST = opt('sset', 'o0,p1e,pub,p2,p2go,p2e,hgo,end').split(',')
assert len(SLIST) <= 7 or True


def stamp_ins(name):
    if STAMP and name in SLIST[:7]:
        return [Ins('s_memtime %s' % S(sSt + 2 + 2 * SLIST.index(name), 2), raw=True)]
    return []


def stamp(seg, name):
    seg.extend(stamp_ins(name))


uid = [0]


def lab(p):
    uid[0] += 1
    return '%s_%d' % (p, uid[0])


tail_code = []


def prologue():
    g = Seg('pro')
    if STAMP or opt('dbgspan', 0):
        g.raw('s_memtime s[98:99]')
        g.raw('s_memrealtime s[96:97]')
    g.I('s_cmp_ge_u32 s2, 256')
    g.I('s_cbranch_scc1 L_end')
    g.I('s_load_dwordx16 s[48:63], s[0:1], 0')
    g.I('s_load_dwordx4 s[64:67], s[0:1], 64')
    g.I('s_load_dwordx2 s[68:69], s[0:1], 80')
    g.I('v_lshrrev_b32 v29, 6, v0')
    g.I('v_and_b32 v0, 63, v0')
    g.I('v_readfirstlane_b32 %s, v29' % S(sWave))
    g.I('s_and_b32 s82, s2, 7')
    g.I('s_lshr_b32 s83, s2, 3')
    if MAPM:
        g.I('s_lshr_b32 s84, s82, 1')
        g.I('s_lshl_b32 s84, s84, 2')
        g.I('s_bfe_u32 %s, s83, 0x20002' % S(sRbl))
        g.I('s_add_u32 %s, s84, %s' % (S(sRb), S(sRbl)))
        g.I('s_and_b32 s84, s82, 1')
        g.I('s_lshl_b32 s84, s84, 2')
        g.I('s_and_b32 s85, s83, 3')
        g.I('s_add_u32 %s, s84, s85' % S(sCg))
        g.I('s_lshr_b32 s82, s83, 4')
        g.I('s_lshl_b32 s84, s82, 2')
        g.I('s_add_u32 s85, s85, s84')
        g.I('s_lshl_b32 s84, %s, 1' % S(sRbl))
        g.I('s_add_u32 s85, s85, s84')
        g.I('s_lshl_b32 s82, s82, 2')
    else:
        g.I('s_and_b32 s84, s82, 3')
        g.I('s_lshl_b32 s84, s84, 2')
        g.I('s_lshr_b32 s85, s83, 3')
        g.I('s_add_u32 %s, s84, s85' % S(sRb))
        g.I('s_and_b32 %s, s83, 7' % S(sCg))
        g.I('s_mov_b32 %s, s85' % S(sRbl))
        g.I('s_lshl_b32 s85, s85, 1')
        g.I('s_add_u32 s85, s85, %s' % S(sCg))
    g.I('s_and_b32 s85, s85, 7')
    g.I('s_lshl_b32 %s, s85, 7' % S(sK1))
    g.I('v_lshrrev_b32 v29, 3, v0')
    g.I('v_lshrrev_b32 v30, 4, v0')
    g.I('v_and_b32 v31, 7, v0')
    g.I('v_xor_b32 v31, v31, v30')
    g.I('v_lshlrev_b32 v31, 4, v31')
    g.I('v_lshl_add_u32 v4, v29, 10, v31')
    g.I('v_xor_b32 v5, 64, v4')
    g.I('v_add_u32 v5, %d, v5' % (8192 - 1024))
    g.I('v_add_u32 v6, %d, v4' % (2 * (8192 - 1024)))
    g.I('v_add_u32 v7, %d, v5' % (2 * (8192 - 1024)))
    g.I('s_lshl_b32 s84, %s, 17' % S(sRb))
    g.I('s_lshl_b32 s85, %s, 15' % S(sWave))
    g.I('s_add_u32 %s, s84, s85' % S(sWd))
    g.I('s_cmp_ge_u32 s82, 4')
    g.I('s_cbranch_scc1 L_p1q')
    return g


def srd_first(g, wlo, whi, wsize, wofs):
    g.I('s_waitcnt lgkmcnt(0)')
    g.I('s_add_u32 s4, s48, %s' % S(sWd))
    g.I('s_addc_u32 s5, s49, 0')
    g.I('s_sub_u32 s6, 0x200000, %s' % S(sWd))
    g.I('s_mov_b32 s7, 0x20000')
    if wofs is None:
        g.I('s_mov_b32 s12, s%d\ns_mov_b32 s13, s%d\ns_mov_b32 s14, 0x%x' % (wlo, whi, wsize))
    else:
        g.I('s_add_u32 s12, s%d, %s\ns_addc_u32 s13, s%d, 0\ns_sub_u32 s14, 0x%x, %s' % (wlo, wofs, whi, wsize, wofs))
    g.I('s_mov_b32 s15, 0x20000')


def setup_rest(isq=False):
    o = []
    o += ['s_mov_b32 s20, s68', 's_mov_b32 s21, s69', 's_mov_b32 s22, 0x%x' % WS_SIZE, 's_mov_b32 s23, 0x20000']
    o += ['buffer_load_dword %s, off, %s, 0 sc1' % (V(vTag), sWS)]
    o += ['s_mov_b32 s8, s48', 's_mov_b32 s9, s49', 's_mov_b32 s10, 0x200000', 's_mov_b32 s11, 0x20000']
    o += ['s_mov_b32 s24, s52', 's_mov_b32 s25, s53', 's_mov_b32 s26, 0x80000', 's_mov_b32 s27, 0x20000']
    o += ['s_mov_b32 s28, s62', 's_mov_b32 s29, s63', 's_mov_b32 s30, 0xe0000', 's_mov_b32 s31, 0x20000']
    o += ['s_mov_b32 s32, s64', 's_mov_b32 s33, s65', 's_mov_b32 s34, 0x200000', 's_mov_b32 s35, 0x20000']
    o += ['s_mov_b32 s36, s60', 's_mov_b32 s37, s61', 's_mov_b32 s38, 0x1000', 's_mov_b32 s39, 0x20000']
    o += ['s_mov_b32 s40, s66', 's_mov_b32 s41, s67', 's_mov_b32 s42, 256', 's_mov_b32 s43, 0x20000']
    if NJ == 4:
        o += ['s_and_b32 s84, s2, 7', 's_lshr_b32 s85, s2, 3', 's_lshr_b32 %s, s85, 2' % S(sTbl), 's_and_b32 %s, s85, 3' % S(sJl),
              's_lshr_b32 s85, s84, 1', 's_lshl_b32 s85, s85, 3', 's_add_u32 %s, s85, %s' % (S(sTb), S(sTbl)),
              's_and_b32 s84, s84, 1', 's_lshl_b32 s84, s84, 2', 's_add_u32 %s, s84, %s' % (S(sJ), S(sJl))]
    else:
        o += ['s_and_b32 s84, s2, 7', 's_lshr_b32 %s, s2, 6' % S(sTbl), 's_lshr_b32 s85, s2, 3', 's_and_b32 %s, s85, 7' % S(sJl),
              's_lshl_b32 s84, s84, 2', 's_add_u32 %s, s84, %s' % (S(sTb), S(sTbl)), 's_mov_b32 %s, %s' % (S(sJ), S(sJl))]
    if ROT2:
        o += ['s_and_b32 s76, %s, 3' % S(sTbl), 's_lshl_b32 s76, s76, 8']
    else:
        o += ['s_lshl_b32 s76, %s, %d' % (S(sTbl), 7 if NT == 8 else 8)]
    QH = QHELP and isq
    o += ['s_lshl_b32 s84, %s, 18' % S(sTb)] + (['s_sub_u32 s84, s84, 0x100000'] if QH else [])
    o += ['s_lshl_b32 s85, %s, 10' % S(sWave), 's_add_u32 s84, s84, s85',
          ['s_sub_u32 s16, s58, 3072', 's_subb_u32 s17, s59, 0'], ['s_add_u32 s16, s16, s84', 's_addc_u32 s17, s17, 0'],
          's_sub_u32 s18, 0x%x, s84' % (0x800000 + 3072), 's_mov_b32 s19, 0x20000']
    if STAMP or opt('dbgspan', 0):
        o += ['s_mov_b32 s48, s98', 's_mov_b32 s1, s96']
    o += ['s_and_b32 s84, %s, 2' % S(sWave), 's_lshl_b32 %s, s84, 16' % S(sDA), 's_xor_b32 %s, %s, 0x20000' % (S(sDA + 1), S(sDA)),
          's_add_u32 s85, %s, 1' % S(sWave), 's_and_b32 s84, s85, 2', 's_lshl_b32 %s, s84, 16' % S(sDB),
          's_xor_b32 %s, %s, 0x20000' % (S(sDB + 1), S(sDB))]
    o += ['v_lshrrev_b32 v29, 3, v0', 'v_lshrrev_b32 v30, 4, v0', 'v_and_b32 v31, 7, v0', 'v_xor_b32 v31, v31, v30',
          'v_lshlrev_b32 v31, 4, v31', 'v_lshl_add_u32 v31, v29, 12, v31', 'v_xor_b32 v30, 64, v31',
          's_and_b32 s84, %s, 1' % S(sWave), 's_lshl_b32 s84, s84, 16'] + (['s_add_u32 s84, s84, 0x100000'] if QH else []) + [
          's_xor_b32 s85, s84, 0x10000',
          's_add_u32 s83, s84, 3072', 'v_add_u32 v8, s83, v31', 's_add_u32 s83, s84, %d' % (8 * 4096 + 2048), 'v_add_u32 v9, s83, v30',
          's_add_u32 s83, s85, 1024', 'v_add_u32 v10, s83, v31', 's_add_u32 s83, s85, %d' % (8 * 4096), 'v_add_u32 v11, s83, v30']
    o += ['v_lshlrev_b32 %s, 4, v0' % V(vL16), 'v_and_b32 v29, 15, v0', 'v_lshrrev_b32 v30, 4, v0', 'v_lshrrev_b32 v31, 1, v29',
          'v_xor_b32 v31, v31, v30', 'v_lshlrev_b32 v31, 4, v31', 'v_lshl_add_u32 v31, v29, 7, v31',
          'v_add_u32 v2, %s, v31' % S(sPriv), 'v_xor_b32 v3, 64, v2']
    c1 = -2.0 * math.sqrt(2.0 / math.pi) * math.log2(math.e)
    for r, val in ((sLN, f2u(1.0 / 512)), (sLN + 1, f2u(1e-5)), (sLN2, f2u(1.0 / 896)), (sLN2 + 1, f2u(1e-5)),
                   (sGE, f2u(c1 * 0.044715)), (sGE + 1, f2u(c1)), (sPar, 0xaaaaaaaa), (sPar + 1, 0xaaaaaaaa),
                   (sB2, 0xcccccccc), (sB2 + 1, 0xcccccccc)):
        o.append('s_mov_b32 %s, 0x%x' % (S(r), val))
    for i in range(4):
        o.append('v_mov_b32 %s, 0x3f803f80' % V(vOnes + i))
    return o


def masked(mask, ins):
    if mask == -1:
        return [mk(ins)]
    lo, hi = mask & 0xffffffff, mask >> 32
    if hi == 0 and lo == 0xffffffff:
        pre = ['s_mov_b32 exec_hi, 0']
    elif hi == 0 and lo < 0x80000000:
        pre = ['s_mov_b64 exec, 0x%x' % lo]
    else:
        pre = ['s_mov_b32 exec_hi, 0x%x' % hi] if lo == 0xffffffff else ['s_mov_b32 exec_lo, 0x%x' % lo, 's_mov_b32 exec_hi, 0x%x' % hi]
    return [mk(pre + [ins, 's_mov_b64 exec, -1'])]


def touch(vaddr, srd, soff, mask=-1, imm=0, sc1=False, nt=0):
    return masked(mask, 'buffer_load_dword %s, %s, %s, %s offen%s%s%s ; touch' % (V(TCH[0]), V(vaddr), srd, soff, ' offset:%d' % imm if imm else '', ' sc1' if sc1 else '', ' nt' if nt else ''))


def s_touch_addr(v):
    nr = 64 // NJ
    sh = nr.bit_length() - 1
    return ['v_and_b32 v29, %d, v0' % (nr - 1), 's_lshl_b32 s84, %s, %d' % (S(sJl), sh), 'v_add_u32 v29, s84, v29',
            'v_lshlrev_b32 v29, 12, v29', 'v_lshrrev_b32 v30, %d, v0' % sh, 'v_lshl_add_u32 v30, v30, 7, s76',
            'v_and_b32 v30, 0x380, v30', 'v_add_u32 %s, v29, v30' % V(v)]


def s_touch(v, t):
    if t >= 8 // NJ or opt('nost', 0):
        return []
    return ([mk('v_xor_b32 %s, 512, %s' % (V(v), V(v)))] if t else []) + touch(v, sS, '0', imm=3072, nt=opt('nts', 0))


def w3_touches(v):
    sh = sRbl if QHELP else sTbl
    a, b = (32, 56) if QHELP else (128 // NT, 224 // NT)
    o = ['s_lshl_b32 s84, %s, 7' % S(sJ), 'v_lshl_add_u32 %s, v0, 10, s84' % V(v),
         's_mul_i32 s84, %s, %d' % (S(sh), a * 1024), 's_lshl_b32 s85, %s, 17' % S(sWave), 's_add_u32 s84, s84, s85']
    o = [mk(x) for x in o] + touch(v, sWO, 's84', (1 << a) - 1)
    o += [mk(x) for x in ['s_mul_i32 s84, %s, %d' % (S(sh), b * 1024), 's_mul_i32 s85, %s, %d' % (S(sWave), 224 * 1024), 's_add_u32 s84, s84, s85']]
    return o + touch(v, sWOUT, 's84', (1 << b) - 1)


def keep_lanes(v, n):
    return ['v_cmp_gt_u32 vcc, %d, v0' % n, 'v_mov_b32 v30, 0x40000000', 's_nop 0', 'v_cndmask_b32 %s, v30, %s, vcc' % (V(v), V(v))]


def x_touch_addr(v):
    return ['s_lshl_b32 s84, %s, 2' % S(sCg), 'v_add_u32 v29, s84, v0', 'v_lshlrev_b32 %s, 10, v29' % V(v)] + keep_lanes(v, 4)


def tag_publish():
    return ['v_add_u32 %s, 0x%x, %s' % (V(vTag), PHI, V(vTag)),
            'v_cmp_eq_u32 vcc, 0, %s' % V(vTag),
            'v_mov_b32 v29, 0x%x' % PHI,
            's_lshl_b32 s85, s2, 2',
            'v_cndmask_b32 %s, %s, v29, vcc' % (V(vTag), V(vTag)),
            's_or_b32 s85, s85, %s' % S(sWave),
            's_lshl_b32 s85, s85, 6',
            'v_or_b32 v29, s85, v0',
            'v_cmp_eq_u32 vcc, 0, v29',
            'v_mov_b32 v30, 0x7ffffff0',
            's_nop 0',
            'v_cndmask_b32 v29, v30, 0, vcc',
            'buffer_store_dword %s, v29, %s, 0 offen sc1' % (V(vTag), sWS),
            'buffer_store_dword %s, v29, %s, 0 offen sc1' % (V(vTag), sDBG)]


TAG_FETCH = 'buffer_load_dword %s, off, %s, 0 sc1' % (V(vTag), sDBG)


def tag_check(g):
    ls, lr = lab('L_tagslow'), lab('L_tagret')
    g.I('v_readfirstlane_b32 %s, %s' % (S(sTag), V(vTag)))
    g.I('s_cmp_eq_u32 %s, 0' % S(sTag))
    g.I('s_cbranch_scc1 %s' % ls)
    g.label(lr)
    tail_code.append("""%s:
s_mov_b32 s%d, %d
%s_l:
s_sleep 1
buffer_load_dword v%d, off, %s, 0 sc1
s_waitcnt vmcnt(0)
v_readfirstlane_b32 s%d, v%d
s_sub_u32 s%d, s%d, 1
s_cbranch_scc1 %s
s_cmp_eq_u32 s%d, 0
s_cbranch_scc1 %s_l
s_branch %s""" % (ls, sCnt, SPIN, ls, vTag, sDBG, sTag, vTag, sCnt, sCnt, lr, sTag, ls, lr))


def poll_items(alts, tagregs, tmp):
    ls, lr = lab('L_pslow'), lab('L_pret')
    chk = []
    regs = list(tagregs)
    chk.append('v_xor_b32 %s, %s, %s' % (V(tmp), V(regs[0]), V(vTag)))
    for r in regs[1:]:
        chk.append('v_xor_b32 %s, %s, %s' % (V(r), V(r), V(vTag)))
    rest = regs[1:]
    while rest:
        if len(rest) >= 2:
            chk.append('v_or3_b32 %s, %s, %s, %s' % (V(tmp), V(tmp), V(rest[0]), V(rest[1])))
            rest = rest[2:]
        else:
            chk.append('v_or_b32 %s, %s, %s' % (V(tmp), V(tmp), V(rest[0])))
            rest = []
    chk.append('v_cmp_ne_u32 vcc, 0, %s' % V(tmp))
    items = [mk(c) for c in chk] + [[mk('s_cbranch_vccnz %s' % ls), Ins(lr + ':')]]
    t = ['%s:' % ls, 's_mov_b32 s%d, %d' % (sCnt, SPIN), '%s_l:' % ls]
    for k, loads in enumerate(alts):
        t += loads
        t += ['s_waitcnt vmcnt(0)'] + chk + ['s_nop 1', 's_cbranch_vccz %s' % lr]
    t += ['s_sleep 1', 's_sub_u32 s%d, s%d, 1' % (sCnt, sCnt), 's_cbranch_scc0 %s_l' % ls, 's_branch %s' % lr]
    tail_code.append('\n'.join(t))
    return items


def zflag_addr():
    return ['s_lshl_b32 s84, %s, 2' % S(sJ), 's_lshr_b32 s85, 0x76443200, s84', 's_and_b32 s85, s85, 15', 'v_mov_b32 v5, s85',
            's_lshr_b32 s85, 0x77543310, s84', 's_and_b32 s85, s85, 15', 'v_mov_b32 v6, s85',
            'v_cndmask_b32 v5, v5, v6, %s' % S(sPar, 2), 'v_lshlrev_b32 v5, 7, v5', 'v_bfe_u32 v6, v0, 1, 2',
            'v_lshl_add_u32 v6, v6, 10, v5', 's_lshl_b32 %s, %s, 12' % (S(sRho2), S(sWave)),
            's_add_u32 %s, %s, 0x%x' % (S(sRho2), S(sRho2), WS_ZF)]


ZF_LOAD = 'buffer_load_dwordx4 v[12:15], v6, %s, %s offen sc1' % (sWS, S(sRho2))


def flag_items(toks, base, i1, i2, xor=0):
    o = ['s_lshl_b32 s84, %s, 3' % S(i1)]
    if xor:
        o += ['s_xor_b32 s85, %s, %d' % (S(i2), xor), 's_add_u32 s84, s84, s85']
    else:
        o += ['s_add_u32 s84, s84, %s' % S(i2)]
    o += ['s_lshl_b32 s84, s84, 5', 's_add_u32 s84, s84, %s' % S(sWave), 's_lshl_b32 s84, s84, 2', 's_add_u32 s84, s84, 0x%x' % base]
    w = mk('s_waitcnt vmcnt(0)') if opt('fl0', 0) else mkwait(*toks)
    return [mk(x) for x in o] + [w, mk('buffer_store_dword %s, off, %s, s84 sc1' % (V(vTag), sWS))]


class Priv:
    def __init__(self, nslot):
        self.nslot = nslot
        self.dma, self.rd, self.slot = {}, {}, {}
        self.owner = {}
        self.cnt = 0
        self.pp = 0

    def issue(self, n):
        out = []
        sl = self.cnt % self.nslot
        self.cnt += 1
        if sl in self.owner:
            out.append(mkwait(self.rd[self.owner[sl]]))
        self.owner[sl] = n
        self.slot[n] = sl
        t = self.dma[n] = Tok('P%d' % n)
        out.append(mk('s_add_u32 m0, %s, %d' % (S(sPriv), sl * 4096)))
        if n < 8:
            for q in range(4):
                out.append(mk('buffer_load_dwordx4 %s, %s, %s offen offset:%d lds' % (V(vXa + q), sXw, S(sK1), 1024 * q), tok=t))
        else:
            h = (n - 8) & 1
            pp = (n - 8) >> 1
            if pp != self.pp:
                out.append(mk('s_add_u32 s76, s76, %d' % (((pp - self.pp) & 7) * 128)))
                out.append(mk('s_and_b32 s76, s76, 0x380'))
                self.pp = pp
            out.append(mk('s_add_u32 s82, %s, s76' % S(sDA + h)))
            out.append(mk('s_add_u32 s83, %s, s76' % S(sDB + h)))
            for q in range(4):
                out.append(mk('buffer_load_dwordx4 %s, %s, s%d offen offset:%d lds' % (V(vSa + q), sS, 82 + (q >> 1), 1024 * q), tok=t))
        return out

    def read(self, n):
        out = [mkwait(self.dma[n])]
        t = self.rd[n] = Tok('PR%d' % n)
        for e in range(2):
            for b in range(2):
                if n < 8:
                    dst = xreg(2 * n + e, b)
                else:
                    gi = n - 8
                    dst = sreg(2 * (gi >> 1) + e, 2 * (gi & 1) + b)
                out.append(mk('ds_read_b128 %s, %s offset:%d' % (dst, V(vRd0 + e), self.slot[n] * 4096 + b * 2048), tok=t))
        return out


def build_pass(uses, open_items, L=6):
    G = Gaps()
    first = []
    for u, (st, rds, ms) in enumerate(uses):
        base = vB + 4 * (u % NB)
        first.append(len(G.m))
        for m in ms:
            G.add(m.replace('%B', V(base, 4)))
    pre = []
    opened = {}
    toks = {}
    for u, (st, rds, ms) in enumerate(uses):
        base = vB + 4 * (u % NB)
        t = toks[u] = Tok('B%d' % u)
        r = [mk(rds[h] % V(base + 2 * h, 2), tok=t) for h in range(2)]
        if u < L:
            if st not in opened:
                opened[st] = -1
                pre += open_items(st)
            pre += r
        else:
            g0 = first[u - L]
            if st not in opened:
                opened[st] = g0
                for it in open_items(st):
                    G.put(g0, it)
            G.put(g0, r[0])
            G.put(g0 + 1, r[1])
    for u in range(0, len(uses) - 1, 2):
        G.before(first[u], mkwait(toks[u + 1]))
    return pre, G, first, opened


def row_stats(g, vSM, vSSd, n):
    for i in range(0, n, 2):
        g.I('v_pk_mul_f32 %s, %s, %s op_sel_hi:[1,0]' % (V(vSM + i, 2), V(vSM + i, 2), S(sLN, 2)))
    for i in range(0, n, 2):
        g.I('v_pk_mul_f32 %s, %s, %s op_sel_hi:[1,0]' % (V(vSSd + i, 2), V(vSSd + i, 2), S(sLN, 2)))
    for i in range(0, n, 2):
        g.I('v_pk_fma_f32 %s, %s, %s, %s neg_lo:[1,0,0] neg_hi:[1,0,0]' % (V(vSSd + i, 2), V(vSM + i, 2), V(vSM + i, 2), V(vSSd + i, 2)))
    for i in range(n):
        g.I('v_max_f32 %s, 0, %s' % (V(vSSd + i), V(vSSd + i)))
    for i in range(0, n, 2):
        g.I('v_pk_add_f32 %s, %s, %s op_sel:[0,1] op_sel_hi:[1,1]' % (V(vSSd + i, 2), V(vSSd + i, 2), S(sLN, 2)))
    for i in range(n):
        g.I('v_rsq_f32 %s, %s' % (V(vSSd + i), V(vSSd + i)))
    for i in range(0, n, 2):
        g.I('v_pk_mul_f32 %s, %s, %s' % (V(vSM + i, 2), V(vSM + i, 2), V(vSSd + i, 2)))


def to_lane_layout(src4, dst, vaddr, t0, t1):
    return ['v_cndmask_b32 %s, %s, %s, %s' % (V(t0), V(src4), V(src4 + 1), S(sPar, 2)),
            'v_cndmask_b32 %s, %s, %s, %s' % (V(t1), V(src4 + 2), V(src4 + 3), S(sPar, 2)),
            'v_cndmask_b32 %s, %s, %s, %s' % (V(t0), V(t0), V(t1), S(sB2, 2)),
            'ds_bpermute_b32 %s, %s, %s' % (V(dst), V(vaddr), V(t0))]


def gelu_pairs(pairs, tmp):
    st = [[] for _ in range(8)]
    for y, t in zip(pairs, tmp):
        Y, T = V(y, 2), V(t, 2)
        st[0].append('v_pk_mul_f32 %s, %s, %s' % (T, Y, Y))
        st[1].append('v_pk_fma_f32 %s, %s, %s, %s op_sel:[0,0,1] op_sel_hi:[1,0,1]' % (T, T, S(sGE, 2), S(sGE, 2)))
        st[2].append('v_pk_mul_f32 %s, %s, %s' % (T, T, Y))
        st[3].append('v_exp_f32 %s, %s' % (V(t), V(t)))
        st[3].append('v_exp_f32 %s, %s' % (V(t + 1), V(t + 1)))
        st[4].append('v_pk_add_f32 %s, %s, 1.0 op_sel_hi:[1,0]' % (T, T))
        st[5].append('v_rcp_f32 %s, %s' % (V(t), V(t)))
        st[5].append('v_rcp_f32 %s, %s' % (V(t + 1), V(t + 1)))
        st[6].append('v_pk_mul_f32 %s, %s, %s' % (Y, Y, T))
    return [x for s_ in st for x in s_]


def block_start(q, dst):
    return ['s_lshr_b32 s83, %s, 1' % q, 's_and_b32 s84, s83, 1', 's_lshl_b32 s84, s84, 1', 's_sub_u32 s84, 8, s84',
            's_and_b32 s85, %s, 1' % q, 's_mul_i32 s84, s84, s85', 's_mul_i32 s83, s83, 14', 's_add_u32 %s, s83, s84' % dst]


def p1z_head():
    g = Seg('p1zh')
    g.extend(block_start(S(sCg), S(sSt1)))
    g.I('s_and_b32 s82, %s, 0xfc' % S(sSt1))
    g.I('s_lshl_b32 s82, s82, 5')
    g.I('s_add_u32 s82, s82, 1792')
    g.I('s_mul_i32 %s, %s, %d' % (S(sPriv), S(sWave), LZ_NSLOT * 4096))
    g.I('s_add_u32 %s, %s, %d' % (S(sPriv), S(sPriv), LZ_PRIV))
    g.I('s_lshl_b32 %s, %s, 12' % (S(sWm), S(sWave)))
    g.I('v_bfe_u32 v29, v0, 1, 3')
    g.I('v_xor_b32 v29, v29, v30')
    g.I('v_lshlrev_b32 v29, 5, v29')
    g.I('v_and_b32 v31, 1, v0')
    g.I('v_lshl_or_b32 v29, v31, 4, v29')
    g.I('s_lshl_b32 s83, %s, 4' % S(sWave))
    g.I('v_add_u32 v30, s83, v30')
    g.I('v_mul_u32_u24 v30, 3584, v30')
    g.I('v_add_u32 v12, v30, v29')
    g.I('v_add_u32 v13, %d, v12' % (4 * 3584 - 1024))
    g.I('v_xor_b32 v29, 128, v29')
    g.I('v_add_u32 v14, v30, v29')
    g.I('v_add_u32 v15, %d, v14' % (12 * 3584 - 3072))
    g.I('v_add_u32 v14, %d, v14' % (8 * 3584 - 2048))
    srd_first(g, 56, 57, 0x1c0000, 's82')
    TCH[0] = 189
    g.I('s_mov_b32 %s, s82' % S(sWd))
    g.I('s_lshr_b32 s83, %s, 1' % S(sCg))
    g.I('s_xor_b32 s83, s83, %s' % S(sCg))
    g.I('s_bitcmp1_b32 s83, 0')
    g.I('s_cbranch_scc1 L_p1z6')
    return g


def p1z(n1):
    n2 = 14 - n1
    g = Seg('p1z%d' % n1)
    P = Priv(LZ_NSLOT)
    acc1 = 64
    acc2 = 64 + 8 * n1
    vSM, vSS, vCS = acc2, acc2 + 8, acc2 + 16
    vCS2, vRt = 176, 184
    vZo = 4
    wtok = {}

    def w_issue(s):
        t = wtok[s] = Tok('W%d' % s)
        out = []
        if s == 8:
            out += [mk(['s_sub_u32 s12, s12, %s' % S(sWd), 's_subb_u32 s13, s13, 0']), mk('s_add_u32 s14, s14, %s' % S(sWd))]
        out += [mk('s_add_u32 m0, %s, %d' % (S(sWm), (s & 3) * 16384)), mk('s_mul_i32 s82, %s, 1792' % S(sK1))]
        for t4 in range(4):
            out.append(mk('buffer_load_dwordx4 %s, %s, s82 offen offset:%d lds' % (V(vWa + t4), sW, 1024 * t4), tok=t))
        out += [mk(x) for x in K1_NEXT]
        return out

    def tr_setup(n, st):
        o = ['v_bfe_u32 v29, v0, 2, 2', 'v_lshrrev_b32 v30, 4, v0', 'v_lshl_add_u32 v31, v30, 3, v29', 'v_lshlrev_b32 v31, 8, v31',
             'v_and_b32 v30, 1, v30', 'v_lshl_or_b32 v29, v30, 2, v29', 'v_and_b32 v30, 3, v0', 'v_lshl_or_b32 v31, v30, 3, v31',
             's_and_b32 s97, %s, 3' % S(st)]
        for pp in range(n // 2):
            o += ['s_add_u32 s84, %s, %d' % (S(sWave), pp), ['s_cmp_ge_u32 s84, %d' % (n // 2), 's_cselect_b32 s85, %d, 0' % (n // 2)],
                  's_sub_u32 s84, s84, s85', 's_lshl_b32 s84, s84, 1', 's_add_u32 %s, s84, s97' % S(sFr + pp),
                  'v_xor_b32 v30, %s, v29' % S(sFr + pp), 'v_lshl_or_b32 %s, v30, 5, v31' % V(vTr + 2 * pp),
                  'v_xor_b32 %s, 32, %s' % (V(vTr + 2 * pp + 1), V(vTr + 2 * pp))]
        return o

    TCH[0] = 189

    g.extend(P.issue(0))
    g.extend(w_issue(0))
    rest = setup_rest() + tr_setup(n1, sSt1)
    rest += ['s_xor_b32 s97, %s, 1' % S(sCg)] + block_start('s97', S(sSt2))
    rest += ['s_and_b32 s84, %s, 0xfc' % S(sSt2), 's_lshl_b32 s84, s84, 5', 's_sub_u32 %s, %s, s84' % (S(sWd), S(sWd))]
    rest += ['v_lshrrev_b32 v29, 1, v0', 's_lshl_b32 s84, %s, 7' % S(sRbl), 's_lshl_b32 s85, %s, 5' % S(sWave), 's_add_u32 s84, s84, s85',
             'v_add_u32 v29, s84, v29', 'v_mul_u32_u24 v29, 3584, v29', 'v_and_b32 v30, 1, v0', 'v_lshl_add_u32 v29, v30, 7, v29',
             'v_subrev_u32 v191, %s, v29' % S(sWd)] + s_touch_addr(188)

    def w2_touch(t):
        return touch(191, sW, '0', 0xffffffff << (32 * t))

    m, left = spread([mk(x) for x in rest], P.issue(1) + w_issue(1), vgap=60, start=opt('st1', 100))
    g.extend(m + left)
    g.extend(tag_publish())
    if opt('pre2', 1):
        g.extend(P.issue(2) + w_issue(2))
        if opt('ta0', 1):
            g.extend(w2_touch(0))

    def uses_for(n, s0, acc, cs, first_pass):
        order = [(i, pos) for i in range(14) for pos in range(n)]
        order += [(14, 0), (14, 1), (15, 0), (15, 1)] + [(i, pos) for i in (14, 15) for pos in range(2, n)]
        us = []
        for i, pos in order:
            s, e = s0 + (i >> 1), i & 1
            off = (s & 3) * 16384 + e * 8192
            rds = ['ds_read_b64_tr_b16 %%s, %s offset:%d' % (V(vTr + pos), off + 1024 * h) for h in range(2)]
            ms = []
            for b in range(2):
                d = V(acc + 8 * pos + 4 * b, 4)
                c = d if i else '0'
                ms.append(mfma(d, xreg(i, b), '%B', c) if first_pass else mfma(d, '%B', xreg(i, b), c))
            if pos < 2:
                d = V(cs + 4 * pos, 4)
                c = d if i else '0'
                ms.append(mfma(d, V(vOnes, 4), '%B', c) if first_pass else mfma(d, '%B', V(vOnes, 4), c))
            if first_pass:
                ks = []
                if i < 14 and 2 <= pos < 6:
                    ks = [pos - 2]
                if i >= 14 and pos < 2:
                    ks = [2 * pos, 2 * pos + 1]
                for k in ks:
                    b = k & 1
                    if k < 2:
                        d = V(vSS + 4 * b, 4)
                        ms.append(mfma(d, xreg(i, b), xreg(i, b), d if i else '0'))
                    else:
                        d = V(vSM + 4 * b, 4)
                        ms.append(mfma(d, xreg(i, b), V(vOnes, 4), d if i else '0'))
            us.append((s, rds, ms))
        return us

    def open_items(s):
        it = [mkwait(wtok[s], *([P.dma[s]] if s < 8 else []))] + stamp_ins('o%d' % s) + [mk('s_barrier')]
        if s < 8:
            it += P.read(s)
        return it

    prog = [('i', n) for n in range(8, 13)]
    for n in range(13, 21):
        prog += [('r', n - 5), ('i', n)]
    late = [('r', 16), ('i', 21), ('r', 17), ('i', 22), ('r', 18), ('i', 23), ('r', 19)]

    def take(lst, k):
        out = []
        while lst and k > 0:
            a, n = lst.pop(0)
            out += P.read(n) if a == 'r' else P.issue(n)
            if a == 'i':
                k -= 1
        while lst and lst[0][0] == 'r' and len(lst) == 1:
            out += P.read(lst.pop(0)[1])
        return out

    bgs = {}
    us = uses_for(n1, 0, acc1, vCS, True)

    def open1(s):
        it = open_items(s)
        bg = []
        if s + 2 < 8 and not (s == 0 and opt('pre2', 1)):
            bg += P.issue(s + 2) + w_issue(s + 2)
        if s == opt('tb0', 5):
            bg += [mk(TAG_FETCH)] + ([] if opt('ta0', 1) else w2_touch(0)) + w2_touch(1)
            if not QHELP:
                bg += s_touch(188, 0) + s_touch(188, 1)
        if QHELP and s >= 6:
            bg += take(prog, opt('s67', 1))
        bgs[s] = bg
        return it

    pre, G, first, opened = build_pass(us, open1)
    gi = 0
    for s in range(8):
        gi = G.place(bgs[s], max(gi, opened[s] + 2), vspace=opt('vs1', 4), end=(opened[s + 1] + 6 if s < 7 else None))
    vCsv = acc2 + 24
    vSSd = acc2 + 16
    vS1 = acc2 + 32
    tcs = Tok('cs')
    gi = first[14 * n1 + 4]
    G.place(['v_and_b32 v29, 15, v0', 'v_lshlrev_b32 v29, 2, v29', 'v_add_u32 v29, %d, v29' % LZ_MISC, 's_lshl_b32 s84, %s, 6' % S(sFr),
             'v_add_u32 v30, s84, v29', 'v_lshrrev_b32 v31, 4, v0', 'v_mul_u32_u24 v31, 80, v31'], first[13 * n1])
    it = [mk('ds_write_b32 v30, %s' % V(vCS), tok=tcs), mk('ds_write_b32 v30, %s offset:64' % V(vCS + 4), tok=tcs)]
    gi = G.place(it, gi + 3, cap=12)
    it = [mkwait(tcs), mk('s_barrier')]
    for pp in range(n1 // 2):
        it += ['s_lshl_b32 s84, %s, 6' % S(sFr + pp), 'v_add_u32 v30, s84, v29', 'ds_read_b32 %s, v30' % V(vCsv + 2 * pp),
               'ds_read_b32 %s, v30 offset:64' % V(vCsv + 2 * pp + 1)]
    for b in range(2):
        for r in range(4):
            it.append('ds_bpermute_b32 %s, v31, %s offset:%d' % (V(vSSd + 4 * b + r), V(vSS + 4 * b + r), 4 * r))
    G.place(it, gi + 3, cap=12)
    g.extend(pre)
    G.emit(g)
    stamp(g, 'p1e')
    row_stats(g, vSM, vSSd, 8)
    tag_check(g)
    stamp(g, 'gel')
    main = []
    for pos in range(n1):
        pr = [acc1 + 8 * pos + 2 * k for k in range(4)]
        tm = [vB + 8 * (pos & 1) + 2 * k for k in range(4)]
        sel = 'op_sel_hi:[1,0]' if pos % 2 == 0 else 'op_sel:[0,1] op_sel_hi:[1,1]'
        cp = V(vCsv + (pos & ~1), 2)
        for k in range(4):
            main.append('v_pk_mul_f32 %s, %s, %s %s' % (V(tm[k], 2), V(vSM + 2 * k, 2), cp, sel))
        for k in range(4):
            main.append('v_pk_fma_f32 %s, %s, %s, %s neg_lo:[0,0,1] neg_hi:[0,0,1]' % (V(pr[k], 2), V(pr[k], 2), V(vSSd + 2 * k, 2), V(tm[k], 2)))
        main += gelu_pairs(pr, tm)
        for k in range(4):
            if pos == 0:
                main.append('v_pk_mul_f32 %s, %s, %s' % (V(vS1 + 8 + 2 * k, 2), V(pr[k], 2), V(pr[k], 2)))
            else:
                main.append('v_pk_fma_f32 %s, %s, %s, %s' % (V(vS1 + 8 + 2 * k, 2), V(pr[k], 2), V(pr[k], 2), V(vS1 + 8 + 2 * k, 2)))
            if pos == 1:
                main.append('v_pk_add_f32 %s, %s, %s' % (V(vS1 + 2 * k, 2), V(pr[k], 2), V(pr[k] - 8, 2)))
            elif pos > 1:
                main.append('v_pk_add_f32 %s, %s, %s' % (V(vS1 + 2 * k, 2), V(pr[k], 2), V(vS1 + 2 * k, 2)))
    bg = []
    if QHELP:
        bg = w_issue(8) + take(prog, opt('gg%d' % n1, 6 if n1 == 8 else 4)) + w_issue(9)
    m, left = spread([mk(x) for x in main], bg, vgap=opt('vgg', 70))
    g.extend(m)
    stamp(g, 'gle')
    vW_ = vB
    for k in range(2):
        for r in range(4):
            x0, x1, d = vS1 + 8 * k + r, vS1 + 8 * k + 4 + r, vW_ + 4 * k + r
            g.I('v_add_f32_dpp %s, %s, %s row_ror:8 row_mask:0xf bank_mask:0x3' % (V(d), V(x0), V(x0)))
    g.I('v_mov_b32 %s, %s' % (V(vTag), S(sTag)))
    for k in range(2):
        for r in range(4):
            x0, x1, d = vS1 + 8 * k + r, vS1 + 8 * k + 4 + r, vW_ + 4 * k + r
            g.I('v_add_f32_dpp %s, %s, %s row_ror:8 row_mask:0xf bank_mask:0xc' % (V(d), V(x1), V(x1)))
    vU = vB + 8
    vG = vB + 12
    adr = ['v_bfe_u32 v29, v0, 3, 1', 'v_lshlrev_b32 v29, 4, v29', 'v_bfe_u32 v30, v0, 4, 2', 'v_lshl_add_u32 v29, v30, 2, v29',
           'v_bfe_u32 v30, v0, 2, 1', 'v_lshl_add_u32 v29, v30, 1, v29', 'v_and_b32 v30, 1, v0', 'v_add_u32 v29, v29, v30',
           'v_lshlrev_b32 v29, 4, v29']
    for msk, ror, o in (('0x5', 12, 0), ('0xa', 4, 2)):
        for k in range(2):
            for r in range(2):
                x = vW_ + 4 * k + r + o
                g.I('v_add_f32_dpp %s, %s, %s row_ror:%d row_mask:0xf bank_mask:%s' % (V(vU + 2 * k + r), V(x), V(x), ror, msk))
        g.I(adr.pop(0))
        g.I(adr.pop(0))
    g.I('v_mov_b32 %s, %s' % (V(vG + 1), V(vTag)))
    for qp in ('[1,0,3,2]', '[2,3,0,1]'):
        for k in range(4):
            g.I('v_add_f32_dpp %s, %s, %s quad_perm:%s row_mask:0xf bank_mask:0xf' % (V(vU + k), V(vU + k), V(vU + k), qp))
        g.I(adr.pop(0))
        g.I(adr.pop(0))
    g.I(adr.pop(0))
    g.I('v_mov_b32 %s, %s' % (V(vG + 3), V(vTag)))
    g.I('v_cndmask_b32 %s, %s, %s, %s' % (V(vG), V(vU), V(vU + 1), S(sPar, 2)))
    g.I('v_cndmask_b32 %s, %s, %s, %s' % (V(vG + 2), V(vU + 2), V(vU + 3), S(sPar, 2)))
    g.I('s_lshl_b32 s84, %s, 14' % S(sRb))
    g.I('s_lshl_b32 s85, %s, 9' % S(sWave))
    g.I('s_add_u32 s0, s84, s85')
    g.I('s_add_u32 s0, s0, 0x%x' % WS_STA)
    g.I('s_lshl_b32 s85, %s, 11' % S(sCg))
    g.I('s_add_u32 s84, s85, s0')
    g.I('s_add_u32 s85, s84, 0x%x' % (WS_STB - WS_STA))
    if not MAPM:
        g.I('buffer_store_dwordx4 %s, v29, %s, s84 offen' % (V(vG, 4), sWS))
    g.I('buffer_store_dwordx4 %s, v29, %s, s85 offen sc1' % (V(vG, 4), sWS))
    stamp(g, 'pub')
    g.extend(left)
    if not QHELP:
        g.extend(w_issue(8) + w_issue(9))
    g.I('v_and_b32 v30, 15, v0')
    g.I('v_lshrrev_b32 v31, 2, v30')
    g.I('v_lshl_add_u32 v31, v31, 4, v30')
    g.I('v_lshlrev_b32 v31, 2, v31')
    for b in range(2):
        g.extend(to_lane_layout(vSSd + 4 * b, vRt + 2 * b, 31, vB, vB + 1))
        g.extend(to_lane_layout(vSM + 4 * b, vRt + 2 * b + 1, 31, vB + 2, vB + 3))
    for pp in range(n1 // 2):
        g.I('s_lshl_b32 s84, %s, 10' % S(sFr + pp))
        g.I('v_add_u32 %s, s84, %s' % (V(vZo + pp), V(vL16)))
    g.extend(tr_setup(n2, sSt2))
    vGa, vR2, vQ, vGad = 192, 208, 224, 188
    g.I('v_and_b32 v29, 31, v0')
    g.I('v_lshlrev_b32 v29, 4, v29')
    g.I('v_lshrrev_b32 v30, 5, v0')
    g.I('v_lshl_add_u32 %s, v30, 11, v29' % V(vGad))
    g.I('s_waitcnt lgkmcnt(0)')

    def gather(delta):
        o = []
        for i in range(4):
            o.append('s_add_u32 s85, s0, 0x%x' % (4096 * i + delta))
            o.append('buffer_load_dwordx4 %s, %s, %s, s85 offen sc1' % (V(vGa + 4 * i, 4), V(vGad), sWS))
        return o

    nb = Seg('norm')
    nb.extend(stamp_ins('chk'))
    G0 = WS_STB - WS_STA if MAPM else 0
    nb.extend(poll_items([gather(G0)] if MAPM else [gather(0), gather(WS_STB - WS_STA)], [vGa + 1 + 2 * i for i in range(8)], vR2))
    nb.extend(stamp_ins('got'))
    for k in range(2):
        nb.I('v_add_f32 %s, %s, %s' % (V(vGa + 2 * k), V(vGa + 2 * k), V(vGa + 4 + 2 * k)))
        nb.I('v_add_f32 %s, %s, %s' % (V(vGa + 8 + 2 * k), V(vGa + 8 + 2 * k), V(vGa + 12 + 2 * k)))
    for k in range(2):
        nb.I('v_add_f32 %s, %s, %s' % (V(vGa + 2 * k), V(vGa + 2 * k), V(vGa + 8 + 2 * k)))
    for k in range(2):
        nb.I('v_mov_b32 %s, %s' % (V(vGa + 2 * k + 1), V(vGa + 2 * k)))
    nb.I('s_lshl_b32 s85, %s, 8' % S(sWave))
    nb.I('s_add_u32 s85, s85, %d' % (LZ_MISC + 1024))
    for k in range(2):
        nb.I('v_permlane32_swap_b32 %s, %s' % (V(vGa + 2 * k), V(vGa + 2 * k + 1)))
    for k in range(2):
        nb.I('v_add_f32 %s, %s, %s' % (V(vGa + 2 * k), V(vGa + 2 * k), V(vGa + 2 * k + 1)))
    nb.I('v_mul_f32 %s, %s, %s' % (V(vGa), S(sLN2), V(vGa)))
    nb.I('v_mul_f32 %s, %s, %s' % (V(vGa + 2), S(sLN2), V(vGa + 2)))
    nb.I('v_and_b32 v29, 31, v0')
    nb.I('v_fma_f32 %s, -%s, %s, %s' % (V(vGa + 2), V(vGa), V(vGa), V(vGa + 2)))
    nb.I('v_lshl_add_u32 v29, v29, 2, s85')
    nb.I('v_max_f32 %s, 0, %s' % (V(vGa + 2), V(vGa + 2)))
    nb.I('v_lshrrev_b32 v30, 4, v0')
    nb.I('v_add_f32 %s, %s, %s' % (V(vGa + 2), S(sLN2 + 1), V(vGa + 2)))
    nb.I('v_lshl_add_u32 v30, v30, 4, s85')
    nb.I('v_rsq_f32 %s, %s' % (V(vGa + 2), V(vGa + 2)))
    tw = Tok('st2')
    nb.I('s_lshl_b32 s84, %s, 2' % S(sRb))
    nb.I('ds_write_b32 v29, %s' % V(vGa + 2), tok=tw)
    nb.I('v_mul_f32 %s, -%s, %s' % (V(vGa), V(vGa), V(vGa + 2)))
    nb.I('ds_write_b32 v29, %s offset:128' % V(vGa), tok=tw)
    for b in range(2):
        nb.I('ds_read_b128 %s, v30 offset:%d' % (V(vR2 + 4 * b, 4), 64 * b))
        nb.I('ds_read_b128 %s, v30 offset:%d' % (V(vR2 + 8 + 4 * b, 4), 128 + 64 * b))
    nb.I('s_add_u32 s84, s84, %s' % S(sWave))
    nb.I('s_mul_i32 s84, s84, 56')
    nb.I('s_and_b32 s85, %s, 0xfc' % S(sSt1))
    nb.I('s_add_u32 s84, s84, s85')
    nb.I('s_lshl_b32 s84, s84, 10')
    nb.I('s_add_u32 s84, s84, 0x%x' % WS_Z2N)
    tz = Tok('z2n')
    for pp in range(n1 // 2):
        for o in range(2):
            a = acc1 + 8 * (2 * pp + o)
            for k in range(4):
                nb.I('v_pk_fma_f32 %s, %s, %s, %s' % (V(a + 2 * k, 2), V(a + 2 * k, 2), V(vR2 + 2 * k, 2), V(vR2 + 8 + 2 * k, 2)))
        qs = [vQ + 8 * (pp & 1) + 4 * o for o in range(2)]
        for o in range(2):
            a = acc1 + 8 * (2 * pp + o)
            for k in range(4):
                nb.I('v_cvt_pk_bf16_f32 %s, %s, %s' % (V(qs[o] + k), V(a + 2 * k), V(a + 2 * k + 1)))
        for sw in ('v_permlane32_swap_b32', 'v_permlane16_swap_b32'):
            for q in qs:
                nb.I('%s %s, %s' % (sw, V(q), V(q + 2)))
                nb.I('%s %s, %s' % (sw, V(q + 1), V(q + 3)))
        for o in range(2):
            nb.I('buffer_store_dwordx4 %s, %s, %s, s84 offen offset:%d %s' % (V(qs[o], 4), V(vZo + pp), sWS, 1024 * o, opt('z2f', 'sc1').replace('+', ' ')), tok=tz)
    nb.extend(stamp_ins('nrm'))

    SG = opt('sg%d' % n1, 8 if n1 == 8 else 9)
    SN = opt('sn%d' % n1, 10 if n1 == 8 else 11)
    SF = opt('sf%d' % n1, SN + 2)
    bgs = {}

    def open2(s):
        it = open_items(s)
        bg = []
        if s == SG:
            bg += [mk(x) for x in gather(G0)]
        if s + 2 < 16:
            bg += w_issue(s + 2)
        if s == SF:
            bg = flag_items([tz], WS_ZF, sRb, sCg) + stamp_ins('zfl') + bg
        k = opt('sp', 1)
        bg += take(prog, k) if prog else (take(late, k) if s >= SN else [])
        bgs[s] = bg
        return it

    us = uses_for(n2, 8, acc2, vCS2, False)
    pre, G, first, opened = build_pass(us, open2)
    ni = first[(SN - 8) * 2 * n2]
    G.pre.setdefault(ni, [])
    G.pre[ni] = nb.ins + G.pre[ni]
    gi = 0
    for s in range(8, 16):
        st = opened[s] + 2
        if s == SN:
            st = ni
        en = opened[s + 1] + 4 if s < 15 else None
        if s == SN - 1:
            en = ni - 1
        gi = G.place(bgs[s], max(gi, st), vspace=opt('vs2', 3), cap=opt('cap2', 12), end=en)
    tcs = Tok('cs2')
    G.place(['v_lshrrev_b32 v29, 4, v0', 'v_lshlrev_b32 v29, 4, v29', 'v_add_u32 v29, %d, v29' % (LZ_MISC + 512),
             's_lshl_b32 s84, %s, 6' % S(sFr), 'v_add_u32 v30, s84, v29'], first[13 * n2], cap=12)
    gi = G.place([mk('ds_write_b128 v30, %s' % V(vCS2, 4), tok=tcs), mk('ds_write_b128 v30, %s offset:64' % V(vCS2 + 4, 4), tok=tcs)],
                 first[14 * n2 + 4] + 3, cap=12)
    vC2 = acc1
    it = [mkwait(tcs), mk('s_barrier')]
    for pp in range(n2 // 2):
        it += ['s_lshl_b32 s84, %s, 6' % S(sFr + pp), 'v_add_u32 v30, s84, v29', 'ds_read_b128 %s, v30' % V(vC2 + 8 * pp, 4),
               'ds_read_b128 %s, v30 offset:64' % V(vC2 + 8 * pp + 4, 4)]
    G.place(it, gi + 3, cap=12)
    g.extend(pre)
    G.emit(g)
    stamp(g, 'p2z')
    rem = take(prog, 99) + take(late, 99)
    g.I('s_lshl_b32 s85, %s, 3' % S(sRb))
    g.I('s_lshl_b32 s84, %s, 1' % S(sWave))
    g.I('s_add_u32 s85, s85, s84')
    g.I('s_mul_i32 s85, s85, %d' % (28 * 1024))
    g.I('s_and_b32 s84, %s, 0xfc' % S(sSt2))
    g.I('s_lshl_b32 s84, s84, 9')
    g.I('s_add_u32 s85, s85, s84')
    g.I('s_add_u32 s85, s85, 0x%x' % WS_Z1R)
    zm = []
    tz1 = Tok('z1r')
    tq = vB
    for pp in range(n2 // 2):
        zm.append('s_lshl_b32 s96, %s, 9' % S(sFr + pp))
        zm.append('s_add_u32 s96, s96, s85')
        zm.append('s_add_u32 s97, s96, %d' % (28 * 1024))
        for b in range(2):
            q = tq + 16 + 4 * ((2 * pp + b) & 3)
            rt = V(vRt + 2 * b, 2)
            for o in range(2):
                pos = 2 * pp + o
                for k in range(2):
                    zm.append('v_pk_mul_f32 %s, %s, %s op_sel:[0,1] op_sel_hi:[1,1]' % (V(tq + 4 * o + 2 * k, 2), V(vC2 + 4 * pos + 2 * k, 2), rt))
            for o in range(2):
                a = acc2 + 8 * (2 * pp + o) + 4 * b
                for k in range(2):
                    zm.append('v_pk_fma_f32 %s, %s, %s, %s op_sel_hi:[1,0,1] neg_lo:[0,0,1] neg_hi:[0,0,1]' % (V(a + 2 * k, 2), V(a + 2 * k, 2), rt, V(tq + 4 * o + 2 * k, 2)))
            for o in range(2):
                a = acc2 + 8 * (2 * pp + o) + 4 * b
                for k in range(2):
                    zm.append('v_cvt_pk_bf16_f32 %s, %s, %s' % (V(q + 2 * o + k), V(a + 2 * k), V(a + 2 * k + 1)))
            zm.append(mk('buffer_store_dwordx4 %s, %s, %s, %s offen%s' % (V(q, 4), V(vL16), sWS, S(96 + b), '' if opt('z1p', 0) else ' sc1'), tok=tz1))
    if opt('zlast', 0):
        g.extend(rem)
        stamp(g, 'rem')
        for n in range(20, 24):
            g.wait(P.dma[n])
        stamp(g, 'rem2')
        rem = []
    m, left = spread([mk(x) for x in zm], rem, vgap=60)
    g.extend(m + left)
    for n in range(20, 24):
        g.extend(P.read(n))
    g.extend(zflag_addr() + [ZF_LOAD])
    g.I('s_xor_b32 s83, %s, 1' % S(sCg))
    g.I('s_lshl_b32 s82, %s, 3' % S(sRb))
    g.I('s_add_u32 s82, s82, s83')
    g.I('s_lshl_b32 s82, s82, 7')
    g.I('s_add_u32 s0, s82, 0x%x' % WS_Z1F)
    g.extend(poll_items([[ZF_LOAD]], [12, 13, 14, 15], 29))
    g.I('s_waitcnt lgkmcnt(0)')
    g.I('s_branch L_p2')
    return g


def p1q():
    g = Seg('p1q')
    P = Priv(LQ_NSLOT)
    acc, hal, vSM, vSS, vHS = 64, 160, 172, 180, 188
    vRdH = vTr + 4
    wtok = {}

    def accr(u, hp, b):
        return acc + 32 * u + 8 * hp + 4 * b

    def w_issue(s):
        t = wtok[s] = Tok('W%d' % s)
        out = [mk('s_mul_i32 s82, %s, 1536' % S(sWd))]
        for e in range(2):
            out.append(mk('s_add_u32 m0, %s, %d' % (S(sWm), (s % 3) * 24576 + e * 12288)))
            if e:
                out.append(mk('s_add_u32 s82, s82, %d' % (32 * 3072)))
            for u in range(3):
                out.append(mk('buffer_load_dwordx4 %s, %s, s82 offen offset:%d lds' % (V(vWa), sW, 1024 * u), tok=t))
        out += [mk('s_add_u32 %s, %s, 128' % (S(sWd), S(sWd))), mk('s_and_b32 %s, %s, 0x380' % (S(sWd), S(sWd)))]
        return out

    def x_issue(s):
        return P.issue(s) + [mk(x) for x in K1_NEXT]

    g.I('s_lshl_b32 %s, %s, 14' % (S(sPriv), S(sWave)))
    g.I('s_add_u32 %s, %s, %d' % (S(sPriv), S(sPriv), LQ_PRIV))
    g.I('s_mul_i32 %s, %s, 3072' % (S(sWm), S(sWave)))
    g.I('v_lshrrev_b32 v31, 3, v0')
    g.I('v_bfe_u32 v29, v0, 4, 1')
    g.I('s_and_b32 s82, %s, 1' % S(sWave))
    g.I('s_lshl_b32 s82, s82, 1')
    g.I('v_or_b32 v29, s82, v29')
    g.I('v_bfe_u32 v30, v0, 1, 2')
    g.I('v_xor_b32 v29, v29, v30')
    g.I('v_lshlrev_b32 v29, 5, v29')
    g.I('v_and_b32 v30, 1, v0')
    g.I('v_lshl_or_b32 v29, v30, 4, v29')
    g.I('s_lshl_b32 s82, %s, 3' % S(sWave))
    g.I('v_add_u32 v30, s82, v31')
    g.I('v_mul_u32_u24 v30, 3072, v30')
    g.I('s_lshl_b32 s82, %s, 7' % S(sCg))
    g.I('v_add3_u32 %s, v30, v29, s82' % V(vWa))
    hreg = [13, 14, 15, 22]
    g.I('s_lshl_b32 s84, %s, 17' % S(sRb))
    g.I('s_sub_u32 s84, s84, 16384')
    for t2 in range(2):
        g.I('s_lshl_b32 s82, %s, 8' % S(sWave))
        g.I('s_add_u32 s82, s82, %s' % S(sK1))
        if t2:
            g.I('s_add_u32 s82, s82, 128')
        g.I('s_and_b32 s82, s82, 0x380')
        g.I('s_add_u32 s82, s82, s84')
        if t2:
            g.I('s_sub_u32 s82, s82, 2048')
        for q in range(2):
            g.I('v_add_u32 %s, s82, %s' % (V(hreg[2 * t2 + q]), V(vXa + q)))
    vTw, vTs = 245, 246
    srd_first(g, 50, 51, 0x180000, None)
    g.I('s_mov_b32 %s, %s' % (S(sWd), S(sK1)))
    TCH[0] = 23
    g.extend(x_issue(0))
    g.extend(w_issue(0))
    th = Tok('halo')
    g.I('s_mov_b32 s8, s48\ns_mov_b32 s9, s49\ns_mov_b32 s10, 0x200000\ns_mov_b32 s11, 0x20000')
    g.I('s_lshl_b32 s83, %s, 12' % S(sWave))
    g.I('s_add_u32 m0, s83, %d' % LQ_HALO)
    for t in range(4):
        g.I('buffer_load_dwordx4 %s, %s, 0 offen offset:%d lds' % (V(hreg[t]), sX, 1024 * t), tok=th)
    rest = setup_rest(True) + s_touch_addr(vTs)
    if QHELP:
        rest += ['v_xor_b32 %s, %d, %s' % (V(vTw), 0 if ROT2 else 512, V(vTs)), 'v_add_u32 %s, 0x100000, %s' % (V(vTs), V(vTs))]
    rest += ['v_lshrrev_b32 v30, 4, v0', 'v_mul_u32_u24 v31, 3072, v30', 'v_bfe_u32 v29, v0, 2, 2', 'v_lshl_add_u32 v31, v29, 7, v31',
             'v_and_b32 v29, 3, v0', 'v_lshl_add_u32 v31, v29, 3, v31', 'v_bfe_u32 v29, v0, 3, 2', 'v_xor_b32 v29, %s, v29' % S(sWave),
             'v_lshl_add_u32 %s, v29, 5, v31' % V(vTr)]
    for hp in range(1, 4):
        rest.append('v_xor_b32 %s, %d, %s' % (V(vTr + hp), hp << 5, V(vTr)))
    rest += ['s_sub_u32 s84, %d, %s' % (LQ_HALO, S(sPriv)), 'v_add_u32 %s, s84, %s' % (V(vRdH), V(vRd0)),
             'v_add_u32 %s, s84, %s' % (V(vRdH + 1), V(vRd1))]
    rest += ['v_lshrrev_b32 v29, 3, v0', 'v_lshlrev_b32 v29, 11, v29', 'v_and_b32 v30, 7, v0', 'v_lshl_add_u32 v29, v30, 4, v29',
             's_lshl_b32 s84, %s, 12' % S(sWave), 's_add_u32 s84, s84, %d' % LQ_HALO, 'v_add_u32 v31, s84, v29']
    m, left = spread([mk(x) for x in rest], x_issue(1) + w_issue(1), vgap=60, start=opt('st1', 100))
    g.extend(m + left)
    g.extend(tag_publish())
    tone = Tok('ones')
    g.wait(th)
    g.I('s_mov_b64 exec, 0xffff')
    g.I('ds_write_b128 v31, %s' % V(vOnes, 4), tok=tone)
    g.I('s_mov_b64 exec, -1')

    hq = [V(192, 4), V(196, 4)]
    order = [(i, hp, u) for i in range(14) for hp in range(4) for u in range(3)]
    order += [(i, 0, u) for i in (14, 15) for u in range(3)] + [(i, hp, u) for i in (14, 15) for hp in range(1, 4) for u in range(3)]
    us = []
    hread = []
    for i, hp, u in order:
        s, e = i >> 1, i & 1
        k = 3 * hp + u
        off = (s % 3) * 24576 + e * 12288 + u * 1024
        rds = ['ds_read_b64_tr_b16 %%s, %s offset:%d' % (V(vTr + hp), off + 512 * h) for h in range(2)]
        ms = []
        for b in range(2):
            d = V(accr(u, hp, b), 4)
            c = d if i else '0'
            ms.append(mfma(d, '%B', xreg(i, b), c) if u < 2 else mfma(d, xreg(i, b), '%B', c))
        if hp == 0:
            d = V(hal + 4 * u, 4)
            c = d if i else '0'
            ms.append(mfma(d, '%B', hq[e], c) if u < 2 else mfma(d, hq[e], '%B', c))
        ks = []
        if i < 14 and 3 <= k < 8:
            ks = [k - 3]
        if i >= 14 and hp == 0:
            ks = [(0, 1), (2, 3), (4,)][u]
        for kk in ks:
            if kk < 2:
                d = V(vSS + 4 * kk, 4)
                ms.append(mfma(d, xreg(i, kk), xreg(i, kk), d if i else '0'))
            elif kk < 4:
                d = V(vSM + 4 * (kk - 2), 4)
                ms.append(mfma(d, xreg(i, kk - 2), V(vOnes, 4), d if i else '0'))
            else:
                d = V(vHS, 4)
                ms.append(mfma(d, hq[e], hq[e], d if i else '0'))
        if i < 14 and k == 8:
            hread.append((len(us), 'ds_read_b128 %s, %s offset:%d' % (hq[e], V(vRdH + e), 2048 * ((i + 2) >> 1))))
        us.append((s, rds, ms))
    bgs = {}
    SQ0 = opt('sq0', 7 if QHELP else 4)

    def openq(s):
        it = [mkwait(wtok[s], P.dma[s], *([tone] if s == 0 else []))] + stamp_ins('o%d' % s) + [mk('s_barrier')]
        it += P.read(s)
        if s == 0:
            it += [mk('ds_read_b128 %s, %s' % (hq[e], V(vRdH + e))) for e in range(2)]
        bg = []
        if s == 0:
            bg += w_issue(2)
        if s >= 2 and s + 1 < 8:
            bg += w_issue(s + 1)
        if s > SQ0:
            bg += P.read(8 + s - SQ0 - 1)
        if s + 2 < 8:
            bg += x_issue(s + 2)
        if s >= SQ0:
            bg += P.issue(8 + s - SQ0)
        if QHELP:
            for st, v, t in ((opt('tq0', 0), vTw, 0), (opt('tq1', 2), vTw, 1), (opt('tq2', 4), vTs, 0), (opt('tq3', 6), vTs, 1)):
                if s == st:
                    bg += s_touch(v, t)
            if s == 6:
                bg.insert(len(bg) - 1, mk(TAG_FETCH))
        else:
            if s == opt('tq0', 0):
                bg += s_touch(vTs, 0)
            if s == 6:
                bg += [mk(TAG_FETCH)] + s_touch(vTs, 1)
        bgs[s] = bg
        return it

    pre, G, first, opened = build_pass(us, openq)
    for u, t in hread:
        G.place([t], first[u] + 1)
    gi = 0
    for s in range(8):
        gi = G.place(bgs[s], max(gi, opened[s] + 2), vspace=opt('vsq', 4), end=(opened[s + 1] - 1 if s < 7 else None))
    nS = 8 + 8 - SQ0
    CS = LQ_MISC
    vR, vRM = 200, 212
    vCv = 224
    vCq = 228
    G.place(['v_lshrrev_b32 v30, 4, v0', 's_lshl_b32 s84, %s, 6' % S(sWave), 's_add_u32 s84, s84, %d' % CS, 'v_lshl_add_u32 v13, v30, 4, s84',
             'v_and_b32 v29, 15, v0', 'v_lshl_add_u32 v14, v29, 2, s84', 'v_mul_u32_u24 v31, 80, v30', 'v_lshlrev_b32 v30, 6, v30'], first[13 * 12])
    tcs = Tok('cs')
    it = [[mk('s_mov_b32 exec_lo, 0x00010001'), mk('s_mov_b32 exec_hi, 0x00010001'), mk('ds_write_b128 v13, %s' % V(hal, 4), tok=tcs),
           mk('ds_write_b128 v13, %s offset:256' % V(hal + 4, 4), tok=tcs), mk('s_mov_b64 exec, 0xffff'),
           mk('ds_write_b32 v14, %s offset:512' % V(hal + 8), tok=tcs), mk('s_mov_b64 exec, -1')]]
    gi = first[14 * 12 + 6] + 3
    G.put(gi, it[0])
    it = []
    for b in range(2):
        for r in range(4):
            it.append('ds_bpermute_b32 %s, v31, %s offset:%d' % (V(vR + 4 * b + r), V(vSS + 4 * b + r), 4 * r))
    for r in range(4):
        it.append('ds_bpermute_b32 %s, v31, %s offset:%d' % (V(vR + 8 + r), V(vHS + r), 4 * r))
    for r in range(4):
        it.append('ds_bpermute_b32 %s, v30, %s' % (V(vRM + 8 + r), V(vHS + r)))
    for i in range(8):
        it.append('v_mov_b32 %s, %s' % (V(vRM + i), V(vSM + i)))
    it += [mkwait(tcs), mk('s_barrier')]
    for hp in range(4):
        if hp:
            it += ['v_xor_b32 v29, %d, v13' % (hp << 6), 'v_xor_b32 v15, %d, v14' % (hp << 6)]
        it.append('ds_read_b128 %s, %s offset:256' % (V(vCq + 4 * hp, 4), 'v29' if hp else 'v13'))
        it.append('ds_read_b32 %s, %s offset:512' % (V(vCv + hp), 'v15' if hp else 'v14'))
    G.place(it, gi + 1, cap=12)
    g.extend(pre)
    G.emit(g)
    stamp(g, 'p1e')
    if QHELP and W3AT == 'p1e':
        g.extend(w3_touches(15))
    vCq0 = vB
    for hp in range(4):
        if hp:
            g.I('v_xor_b32 v29, %d, v13' % (hp << 6))
        g.I('ds_read_b128 %s, %s' % (V(vCq0 + 4 * hp, 4), 'v29' if hp else 'v13'))
    row_stats(g, vRM, vR, 12)
    vRt = 176
    g.I('v_and_b32 v30, 15, v0')
    g.I('v_lshrrev_b32 v31, 2, v30')
    g.I('v_lshl_add_u32 v31, v31, 4, v30')
    g.I('v_lshlrev_b32 v31, 2, v31')
    for b in range(3):
        g.extend(to_lane_layout(vR + 4 * b, vRt + 2 * b, 31, 182, 183))
        g.extend(to_lane_layout(vRM + 4 * b, vRt + 2 * b + 1, 31, 184, 185))
    tag_check(g)
    g.I('v_mov_b32 %s, %s' % (V(vTag), S(sTag)))
    tm = 48
    main = []

    def fold_dp(a, cs4, b):
        rt = V(vRt + 2 * b, 2)
        for k in range(2):
            main.append('v_pk_mul_f32 %s, %s, %s op_sel:[0,1] op_sel_hi:[1,1]' % (V(tm + 2 * k, 2), V(cs4 + 2 * k, 2), rt))
        for k in range(2):
            main.append('v_pk_fma_f32 %s, %s, %s, %s op_sel_hi:[1,0,1] neg_lo:[0,0,1] neg_hi:[0,0,1]' % (V(a + 2 * k, 2), V(a + 2 * k, 2), rt, V(tm + 2 * k, 2)))

    def fold_d(a, hp, b):
        sel = 'op_sel_hi:[1,0]' if hp % 2 == 0 else 'op_sel:[0,1] op_sel_hi:[1,1]'
        for k in range(2):
            main.append('v_pk_mul_f32 %s, %s, %s %s' % (V(tm + 4 + 2 * k, 2), V(vRM + 4 * b + 2 * k, 2), V(vCv + (hp & ~1), 2), sel))
        for k in range(2):
            main.append('v_pk_fma_f32 %s, %s, %s, %s neg_lo:[0,0,1] neg_hi:[0,0,1]' % (V(a + 2 * k, 2), V(a + 2 * k, 2), V(vR + 4 * b + 2 * k, 2), V(tm + 4 + 2 * k, 2)))

    def pack(dst, a):
        for k in range(2):
            main.append('v_cvt_pk_bf16_f32 %s, %s, %s' % (V(dst + k), V(a + 2 * k), V(a + 2 * k + 1)))

    seq = list(range(nS, 16)) + [20, 21, 22, 23, 16, 17, 18, 19]
    prog = [('r', nS - 1)]
    for k, n in enumerate(seq):
        if k >= 3:
            prog.append(('r', seq[k - 3]))
        prog.append(('i', n))
    prog += [('r', n) for n in seq[-3:]]
    VP = 16

    def take(k, allow_v):
        out = []
        while prog and k > 0:
            a, n = prog[0]
            if a == 'r' and VP <= n < 20 and not allow_v:
                break
            prog.pop(0)
            out += P.read(n) if a == 'r' else P.issue(n)
            if a == 'i':
                k -= 1
        return out

    for hp in range(4):
        for b in range(2):
            fold_d(accr(2, hp, b), hp, b)
    fold_d(hal + 8, 0, 2)
    fold_dp(hal + 4, vCq, 2)
    pack(hal + 4, hal + 4)
    pack(hal + 8, hal + 8)
    for hp in range(4):
        for b in range(2):
            fold_dp(accr(1, hp, b), vCq + 4 * hp, b)
        for u in (1, 2):
            a = accr(u, hp, 0)
            main.append('v_cvt_pk_bf16_f32 %s, %s, %s' % (V(a + 3), V(a + 2), V(a + 3)))
            main.append('v_cvt_pk_bf16_f32 %s, %s, %s' % (V(a + 2), V(a), V(a + 1)))
            pack(a + 4, a + 4)
    m, left = spread([mk(x) for x in main], take(2, False), vgap=75)
    g.extend(m + left)
    main = []
    g.I('s_barrier')
    g.I('s_lshl_b32 s84, %s, 12' % S(sWave))
    g.I('s_lshl_b32 s85, %s, 10' % S(sWave))
    g.I('s_add_u32 s84, s84, s85')
    g.I('v_lshlrev_b32 v29, 3, v0')
    g.I('v_add_u32 v13, s84, v29')
    g.I('v_add_u32 v14, s85, v29')
    tx = Tok('xch')
    g.I('ds_write_b64 v14, %s' % V(hal + 4, 2), tok=tx)
    g.I('ds_write_b64 v14, %s offset:512' % V(hal + 8, 2), tok=tx)
    for hp in range(4):
        if hp:
            g.I('v_xor_b32 %s, %d, v13' % (V(vTr + hp), hp << 10))
        ad = V(vTr + hp) if hp else 'v13'
        g.I('ds_write_b64 %s, %s offset:4096' % (ad, V(accr(1, hp, 0) + 4, 2)), tok=tx)
        g.I('ds_write_b64 %s, %s offset:4608' % (ad, V(accr(2, hp, 0) + 4, 2)), tok=tx)
    for hp in range(4):
        for b in range(2):
            fold_dp(accr(0, hp, b), vCq0 + 4 * hp, b)
        a = accr(0, hp, 0)
        pack(a, a)
        pack(a + 2, a + 4)
    vMb = 192
    main += ['v_and_b32 v29, 14, v0', 'v_bfe_u32 v30, v0, 4, 2', 'v_lshlrev_b32 v30, 2, v30', 'v_sub_u32 v29, v29, v30',
             'v_mov_b32 v30, 0x%x' % f2u(-1e30)]
    for k, (cmp_, c) in enumerate((('ge', -2), ('ge', 0), ('le', 0), ('le', 2))):
        main += ['v_cmp_%s_i32 vcc, %d, v29' % (cmp_, c), 'v_cndmask_b32 %s, v30, 0, vcc' % V(vMb + k)]
    main += ['s_lshl_b32 s84, %s, 2' % S(sRb), 's_or_b32 s84, s84, %s' % S(sWave)]
    m, left = spread([mk(x) for x in main], take(1, False), vgap=75)
    g.extend(m + left)
    g.I('s_cmp_eq_u32 s84, 0')
    g.I('s_cselect_b64 vcc, -1, 0')
    g.I('v_cndmask_b32 %s, %s, v30, vcc' % (V(vMb + 4), V(vMb)))
    g.I('v_cndmask_b32 %s, %s, v30, vcc' % (V(vMb + 5), V(vMb + 1)))
    g.I('v_cndmask_b32 %s, 1.0, 0, %s' % (V(vMb + 6), S(sPar, 2)))
    g.I('v_cndmask_b32 %s, 0, 1.0, %s' % (V(vMb + 7), S(sPar, 2)))
    g.I('s_mov_b32 s84, 0x%x' % f2u(0.25 * math.log2(math.e)))
    g.I('s_mov_b32 s85, s84')
    g.wait(tx)
    g.I('s_barrier')
    stamp(g, 'att')
    if QHELP and W3AT == 'att':
        g.extend(w3_touches(15))
        g.I('s_mov_b32 s84, 0x%x' % f2u(0.25 * math.log2(math.e)))
        g.I('s_mov_b32 s85, s84')
    for hp in range(4):
        ad = V(vTr + hp) if hp else 'v13'
        g.I('ds_read_b64 %s, %s' % (V(accr(1, hp, 0), 2), ad))
        g.I('ds_read_b64 %s, %s offset:512' % (V(accr(2, hp, 0), 2), ad))
    to = Tok('o')
    vO = 160
    for b in (1, 0):
        T = [vB + 8 * hp for hp in range(4)]
        U = [200 + 6 * hp for hp in range(4)]
        st = [[] for _ in range(20)]
        for hp in range(4):
            t, u_ = T[hp], U[hp]
            kq, q = accr(1, hp, 0), accr(0, hp, 0) + 2 * b
            st[0].append('v_mfma_f32_16x16x16_bf16 %s, %s, %s, 0' % (V(t, 4), V(kq + 2 * b, 2), V(q, 2)))
            st[0].append('v_mfma_f32_16x16x16_bf16 %s, %s, %s, 0' % (V(t + 4, 4), V(kq + 2 * b + 2, 2), V(q, 2)))
            for k in range(4):
                st[1].append('v_cndmask_b32 %s, %s, %s, %s' % (V(u_ + k), V(t + 2 * k), V(t + 2 * k + 1), S(sPar, 2)))
            m01 = V(vMb + 4, 2) if b == 0 else V(vMb, 2)
            st[2].append('v_pk_fma_f32 %s, %s, s[84:85], %s' % (V(u_, 2), V(u_, 2), m01))
            st[2].append('v_pk_fma_f32 %s, %s, s[84:85], %s' % (V(u_ + 2, 2), V(u_ + 2, 2), V(vMb + 2, 2)))
            st[3].append('v_max3_f32 %s, %s, %s, %s' % (V(u_ + 4), V(u_), V(u_ + 1), V(u_ + 2)))
            st[4].append('v_max_f32 %s, %s, %s' % (V(u_ + 4), V(u_ + 4), V(u_ + 3)))
            st[5].append('v_mov_b32 %s, %s' % (V(u_ + 5), V(u_ + 4)))
            st[6].append('v_permlane32_swap_b32 %s, %s' % (V(u_ + 4), V(u_ + 5)))
            st[7].append('v_max_f32 %s, %s, %s' % (V(u_ + 4), V(u_ + 4), V(u_ + 5)))
            st[7].append('v_mov_b32 %s, %s' % (V(u_ + 5), V(u_ + 4)))
            st[8].append('v_permlane16_swap_b32 %s, %s' % (V(u_ + 4), V(u_ + 5)))
            st[9].append('v_max_f32 %s, %s, %s' % (V(u_ + 4), V(u_ + 4), V(u_ + 5)))
            for k in range(2):
                st[10].append('v_pk_add_f32 %s, %s, %s op_sel_hi:[1,0] neg_lo:[0,1] neg_hi:[0,1]' % (V(u_ + 2 * k, 2), V(u_ + 2 * k, 2), V(u_ + 4, 2)))
            for k in range(4):
                st[11].append('v_exp_f32 %s, %s' % (V(u_ + k), V(u_ + k)))
            st[12].append('v_pk_add_f32 %s, %s, %s' % (V(u_ + 4, 2), V(u_, 2), V(u_ + 2, 2)))
            st[13].append('v_add_f32 %s, %s, %s' % (V(u_ + 4), V(u_ + 4), V(u_ + 5)))
            st[13].append('v_mov_b32 %s, %s' % (V(u_ + 5), V(u_ + 4)))
            st[14].append('v_permlane32_swap_b32 %s, %s' % (V(u_ + 4), V(u_ + 5)))
            st[15].append('v_add_f32 %s, %s, %s' % (V(u_ + 4), V(u_ + 4), V(u_ + 5)))
            st[15].append('v_mov_b32 %s, %s' % (V(u_ + 5), V(u_ + 4)))
            st[16].append('v_permlane16_swap_b32 %s, %s' % (V(u_ + 4), V(u_ + 5)))
            st[17].append('v_add_f32 %s, %s, %s' % (V(u_ + 4), V(u_ + 4), V(u_ + 5)))
            st[18].append('v_rcp_f32 %s, %s' % (V(u_ + 4), V(u_ + 4)))
            st[19].append('v_pk_mul_f32 %s, %s, %s op_sel_hi:[1,0]' % (V(u_ + 4, 2), V(vMb + 6, 2), V(u_ + 4, 2)))
        main = [x for s_ in st for x in s_]
        for hp in range(4):
            t, u_ = T[hp], U[hp]
            for k in range(4):
                sel = 'op_sel_hi:[1,0]' if k % 2 == 0 else 'op_sel:[0,1] op_sel_hi:[1,1]'
                main.append('v_pk_mul_f32 %s, %s, %s %s' % (V(t + 2 * k, 2), V(u_ + 4, 2), V(u_ + (k & ~1), 2), sel))
        for hp in range(4):
            t, u_ = T[hp], U[hp]
            for k in range(4):
                main.append('v_cvt_pk_bf16_f32 %s, %s, %s' % (V(u_ + k), V(t + 2 * k), V(t + 2 * k + 1)))
        for hp in range(4):
            main.append(mfma(V(T[hp], 4), V(accr(2, hp, 0) + 2 * b, 4), V(U[hp], 4), '0'))
        m, left = spread([mk(x) for x in main], take(3, False), vgap=75)
        g.extend(m + left)
        for hp in range(4):
            for k in range(2):
                g.I('v_cvt_pk_bf16_f32 %s, %s, %s' % (V(vO + 8 * b + 2 * hp + k), V(T[hp] + 2 * k), V(T[hp] + 2 * k + 1)))
    lsk = lab('L_osw')
    g.I('s_bitcmp1_b32 %s, 0' % S(sWave))
    g.I('s_cbranch_scc0 %s' % lsk)
    for b in range(2):
        for pr in range(2):
            for k in range(2):
                g.I('v_swap_b32 %s, %s' % (V(vO + 8 * b + 4 * pr + k), V(vO + 8 * b + 4 * pr + 2 + k)))
    g.label(lsk)
    g.I('s_lshl_b32 s82, %s, 3' % S(sRb))
    g.I('s_lshl_b32 s83, %s, 1' % S(sWave))
    g.I('s_add_u32 s82, s82, s83')
    g.I('s_lshl_b32 s82, s82, 4')
    g.I('s_lshl_b32 s83, %s, 1' % S(sCg))
    g.I('s_add_u32 s82, s82, s83')
    g.I('s_lshr_b32 s83, %s, 1' % S(sWave))
    g.I('s_add_u32 s82, s82, s83')
    g.I('s_lshl_b32 s82, s82, 10')
    g.I('s_add_u32 s82, s82, 0x%x' % WS_O)
    g.I('s_xor_b32 s83, s82, 1024')
    g.I('s_add_u32 s84, s82, 16384')
    g.I('s_add_u32 s85, s83, 16384')
    for b in range(2):
        for pr in range(2):
            g.I('buffer_store_dwordx4 %s, %s, %s, %s offen sc1' % (V(vO + 8 * b + 4 * pr, 4), V(vL16), sWS, S(82 + 2 * b + pr)), tok=to)
    stamp(g, 'ost')
    g.extend(take(99, True))
    assert not prog
    if QHELP and W3AT == 'end':
        g.extend(w3_touches(15))
    g.I('s_lshl_b32 s82, %s, 3' % S(sRb))
    g.I('s_add_u32 s82, s82, %s' % S(sCg))
    g.I('s_lshl_b32 s82, s82, 7')
    g.I('s_add_u32 s0, s82, 0x%x' % WS_OF)
    g.extend(zflag_addr() + [ZF_LOAD])
    g.extend(poll_items([[ZF_LOAD]], [12, 13, 14, 15], 29))
    g.I('s_waitcnt lgkmcnt(0)')
    return g


def p23():
    g = Seg('p23')
    g.label('L_p2')
    g.I('s_nop 7')
    stamp(g, 'p2')
    acc = 64
    vL16b = 4
    LA = opt('la', 21)
    pool = [A(192 + 4 * i, 4) for i in range(16)] + [V(32 + 4 * i, 4) for i in range(7)]
    bufs = {}
    free = list(pool)
    for u in range(112 + LA):
        if u - LA - 1 >= 0:
            r = bufs[u - LA - 1]
            if not (r.startswith('v') and u - LA >= 35):
                free.append(r)
            i_, c_ = divmod(u - LA - 1, 7)
            if c_ == 6 and i_ < 4:
                free += [sreg(i_, bb) for bb in range(4)]
        if u < 112:
            bufs[u] = free.pop(0)
    TCH[0] = 26
    g.I('s_mul_i32 s85, %s, %d' % (S(sWave), 16 * 56))
    g.I('s_mul_i32 s84, %s, 7' % S(sJ))
    g.I('s_add_u32 s85, s85, s84')
    g.I('s_lshl_b32 s85, s85, 10')
    g.I('s_add_u32 %s, s85, 0x%x' % (S(sWd), WS_Z2N))
    if ROT2:
        g.I('s_and_b32 %s, %s, 3' % (S(sK2), S(sTbl)))
        g.I('s_lshl_b32 %s, %s, 1' % (S(sK2), S(sK2)))
    else:
        g.I('s_mul_i32 %s, %s, %d' % (S(sK2), S(sTbl), 8 // NT))
    g.I('s_lshl_b32 s83, %s, 2' % S(sTb))
    g.I('s_add_u32 s83, s83, %s' % S(sWave))
    g.I('s_lshl_b32 s84, s83, 5')
    g.I('v_and_b32 v16, 15, v0')
    g.I('v_lshlrev_b32 v16, 1, v16')
    g.I('buffer_load_ushort v12, v16, %s, s84 offen' % sB)
    g.I('v_add_u32 %s, 4096, %s' % (V(vL16b), V(vL16)))
    g.I('s_lshl_b32 s83, %s, 2' % S(sWave))
    g.I('s_add_u32 s0, s0, s83')
    g.I('s_lshl_b32 %s, %s, 14' % (S(sPriv), S(sWave)))
    g.I('s_add_u32 %s, %s, %d' % (S(sPriv), S(sPriv), L3_PRIV))
    g.I('s_mov_b32 %s, %s' % (S(sWm), S(sWd)))
    stamp(g, 'p2go')
    tfirst = Tok('first')

    def bload(u):
        i, c = divmod(u, 7)
        out = []
        if c == 0:
            if i & 1 == 0:
                out += ['s_mul_i32 %s, %s, %d' % (S(sWd), S(sK2), 2 * 56 * 1024), 's_add_u32 %s, %s, %s' % (S(sWd), S(sWd), S(sWm))]
            else:
                out += ['s_add_u32 %s, %s, %d' % (S(sWd), S(sWd), 56 * 1024), 's_add_u32 %s, %s, 1' % (S(sK2), S(sK2)),
                        's_and_b32 %s, %s, 7' % (S(sK2), S(sK2))]
        out.append('buffer_load_dwordx4 %s, %s, %s, %s offen offset:%d sc1' % (bufs[u], V(vL16 if c < 4 else vL16b), sWS, S(sWd), 1024 * (c & 3)))
        return out

    for u in range(LA):
        g.I('\n'.join(bload(u)))
    G = Gaps()
    for u in range(112):
        i, c = divmod(u, 7)
        order = range(4) if i < 15 else (1, 2, 3, 0)
        for bb in order:
            d = V(acc + 16 * c + 4 * bb, 4)
            G.add(mfma(d, bufs[u], sreg(i, bb), d if i else '0'))
        G.load[4 * u - 1] = G.load.get(4 * u - 1, 0) + 4
        for x in stamp_ins('u%d' % u):
            G.before(4 * u, x)
    for u in range(LA, 112):
        G.place(bload(u), 4 * (u - LA), cap=8)
    G.place(['buffer_store_dword %s, off, %s, s0 sc1' % (V(vTag), sWS)], 2)
    vZ = 176
    vZf = 32
    vWd, vWt, vOa, vHa = 18, 22, 60, 190
    pre = ['v_lshrrev_b32 v13, 3, v0', 'v_bfe_u32 v14, v0, 1, 2', 'v_lshrrev_b32 v15, 4, v0', 'v_xor_b32 v14, v14, v15',
           'v_lshlrev_b32 v14, 5, v14', 'v_and_b32 v15, 1, v0', 'v_lshl_or_b32 v14, v15, 4, v14',
           's_lshl_b32 s84, %s, 7' % S(sJ), 'v_lshl_add_u32 v14, v13, 10, v14', 'v_add_u32 %s, s84, v14' % V(vWd)]
    for q in range(1, 4):
        pre.append('v_add_u32 %s, %d, %s' % (V(vWd + q), 7168 * q, V(vWd)))
    pre += ['v_lshrrev_b32 v13, 2, v0', 'v_lshlrev_b32 v14, 7, v13', 'v_and_b32 v15, 3, v0', 'v_lshl_add_u32 v14, v15, 3, v14',
            'v_bfe_u32 v13, v0, 3, 2', 'v_lshl_add_u32 v14, v13, 5, v14', 'v_add_u32 %s, %s, v14' % (V(vWt), S(sPriv))]
    for c in range(1, 4):
        pre.append('v_xor_b32 %s, %d, %s' % (V(vWt + c), c << 5, V(vWt)))
    pre += ['s_lshl_b32 s83, %s, 2' % S(sTb)]
    for bb in range(4):
        pre += ['s_add_u32 s84, %s, %d' % (S(sWave), bb), 's_and_b32 s84, s84, 3', 's_add_u32 %s, s84, s83' % S(sFr + bb),
                's_lshl_b32 s84, %s, 14' % S(sFr + bb), 'v_add_u32 %s, s84, %s' % (V(vOa + bb), V(vL16))]
    pre += ['v_and_b32 v6, 1, v0', 'v_lshlrev_b32 v6, 7, v6', 'v_mov_b32 v17, %s' % S(sGE + 1)]
    G.place([[mk(y) for y in x] if isinstance(x, list) else x for x in pre], 16)
    UZ = opt('uz', 38)
    no = 8 // NJ

    def flat(l):
        return [[mk(y) for y in x] if isinstance(x, list) else mk(x) for x in l]

    fl = ['s_lshr_b32 s83, %s, 1' % S(sTb), 's_lshl_b32 s83, s83, 10', 's_add_u32 s84, s83, 0x%x' % WS_Z1F,
          's_lshl_b32 s85, %s, 8' % S(sWave), 's_add_u32 s83, s83, s85', 's_add_u32 s83, s83, 0x%x' % WS_OF,
          'buffer_load_dwordx4 v[8:11], v5, %s, s84 offen sc1' % sWS, 'buffer_load_dwordx4 v[176:179], v6, %s, s83 offen sc1' % sWS]
    G.place(fl, 4 * UZ, vspace=0)
    it = flat(['s_lshl_b32 s84, %s, 12' % S(sWave), 's_add_u32 %s, s84, 0x%x' % (S(sRho3), WS_O),
               's_mul_i32 s84, %s, %d' % (S(sWave), 7 * 1024), 's_add_u32 %s, s84, 0x%x' % (S(sRho2), WS_H),
               's_add_u32 %s, %s, 4096' % (S(sRbl), S(sRho2)),
               'v_lshrrev_b32 v13, %d, v0' % (no - 1), 'v_and_b32 v14, 3, v13', 'v_lshrrev_b32 v13, 2, v13', 'v_lshlrev_b32 v13, 14, v13',
               'v_lshl_add_u32 v13, v14, 10, v13', 'v_and_b32 v14, %d, v0' % (no - 1), 's_mul_i32 s84, %s, %d' % (S(sJl), no),
               'v_add_u32 v14, s84, v14', 'v_lshl_add_u32 v7, v14, 7, v13', 's_lshl_b32 s84, %s, 16' % S(sTb),
               's_add_u32 s97, s84, %s' % S(sRho3),
               'v_lshrrev_b32 v13, %d, v0' % (no - 1), 'v_mul_u32_u24 v14, 37, v13', 'v_lshrrev_b32 v14, 8, v14',
               'v_mul_u32_u24 v14, 21, v14', 'v_add_u32 v13, v13, v14', 'v_and_b32 v14, %d, v0' % (no - 1),
               's_mul_i32 s84, %s, %d' % (S(sJl), no), 'v_add_u32 v14, s84, v14', 'v_lshlrev_b32 v14, 7, v14',
               's_mul_i32 s84, %s, %d' % (S(sTb), 4 * 28 * 1024), 'v_lshl_add_u32 v13, v13, 10, v14', 'v_add_u32 v27, s84, v13'])
    G.place(it, 4 * 24)
    gi = G.place(poll_items([fl], [8, 9, 10, 11, 176, 177, 178, 179], 13), 4 * (UZ + opt('pl', 16)))
    it = ['s_mul_i32 s83, %s, %d' % (S(sFr), 28 * 1024), 's_add_u32 s83, s83, 0x%x' % WS_Z1R, 's_mul_i32 s84, %s, %d' % (S(sJ), 7 * 512),
          's_and_b32 s85, s84, 512', 's_sub_u32 s84, s84, s85', 's_add_u32 s83, s83, s84', 's_lshr_b32 s85, s85, 6',
          's_add_u32 s82, s83, s85',
          's_lshl_b32 s84, s85, 7', 's_add_u32 s83, s83, s84', 's_xor_b32 s85, s85, 8', 's_add_u32 s83, s83, s85']
    for c in range(7):
        it.append('buffer_load_dwordx2 %s, %s, %s, s%d offen offset:%d sc1' % (V(vZ + 2 * c, 2), V(vL16), sWS, 82 + (c & 1), 1024 * (c >> 1)))
    it = flat(it) + touch(7, sWS, 's97', (1 << (16 * no)) - 1, sc1=True) + ([] if QHELP else w3_touches(16))
    gi = G.place(it, gi + 1, vspace=0, cap=12)
    gl = []
    for c2 in range(14):
        y0, y1, t0, t1 = vZf + 2 * c2, vZf + 2 * c2 + 1, 13 + 2 * (c2 & 1), 14 + 2 * (c2 & 1)
        gl += ['v_lshlrev_b32 %s, 16, %s' % (V(y0), V(vZ + c2)), 'v_and_b32 %s, 0xffff0000, %s' % (V(y1), V(vZ + c2))]
        for tmpl in ('v_mul_f32 {t}, {y}, {y}', 'v_fma_f32 {t}, {t}, %s, v17' % S(sGE), 'v_mul_f32 {t}, {t}, {y}', 'v_exp_f32 {t}, {t}',
                     'v_add_f32 {t}, 1.0, {t}', 'v_rcp_f32 {t}, {t}', 'v_mul_f32 {y}, {y}, {t}'):
            for y, t in ((y0, t0), (y1, t1)):
                gl.append(tmpl.format(t=V(t), y=V(y)))
    gi = G.place(gl, gi + opt('zlat', 60), cap=opt('gcap', 8))
    print('gelu ends at gap', gi, 'of', len(G.m), file=sys.stderr)

    wd, wr = {}, {}

    def wreg(k):
        return 64 + 16 * k if k < 4 else (16 * (k - 4) if k < 8 else 128 + 16 * (k - 8))

    obuf = [V(192 + 4 * i, 4) for i in range(16)]

    def oload(k):
        out = []
        for bb in range(4):
            out.append(mk('buffer_load_dwordx4 %s, %s, %s, %s offen offset:%d sc1' % (obuf[4 * k + bb], V(vOa + bb), sWS, S(sRho3), 1024 * k)))
        return out

    def w3_issue(k):
        out = []
        if k - 4 in wr:
            out.append(mkwait(wr[k - 4]))
        t = wd[k] = Tok('w3_%d' % k)
        if k < 4:
            out += flat(['s_lshl_b32 s83, %s, 17' % S(sWave), 's_add_u32 s83, s83, %d' % (k << 15)])
        else:
            out += flat(['s_mul_i32 s83, %s, %d' % (S(sWave), 7 << 15), 's_add_u32 s83, s83, %d' % ((k - 4) << 15)])
        out += [mk('s_add_u32 m0, %s, %d' % (S(sPriv), (k & 3) * 4096))]
        for q in range(4):
            out.append(mk('buffer_load_dwordx4 %s, %s, s83 offen offset:%d lds' % (V(vWd + q), sWO if k < 4 else sWOUT, 1024 * q), tok=t))
        return out

    def w3_read(k):
        out = [mkwait(wd[k])]
        t = wr[k] = Tok('w3r_%d' % k)
        for c in range(4):
            for h in range(2):
                out.append(mk('ds_read_b64_tr_b16 %s, %s offset:%d' % (A(wreg(k) + 4 * c + 2 * h, 2), V(vWt + c), (k & 3) * 4096 + 2048 * h), tok=t))
        return out

    tail = []
    for k in range(4):
        tail += w3_issue(k)
    tail += w3_read(0) + w3_issue(4)
    G.place(tail, 4 * (112 - LA) + 1, vspace=opt('vst', 4), cap=12)
    bgA = oload(0) + w3_read(1) + w3_issue(5)
    bgB = oload(1) + w3_read(2) + w3_issue(6) + oload(2) + w3_read(3) + w3_issue(7) + oload(3)
    tr = Tok('red')
    it = []
    for bb in range(1, 4):
        it += ['s_add_u32 s84, %s, %d' % (S(sWave), bb), 's_and_b32 s84, s84, 3', 's_mul_i32 s84, s84, 21504',
               's_add_u32 s84, s84, %d' % ((bb - 1) * 7168), 'v_add_u32 %s, s84, %s' % (V(28 + bb), V(vL16))]
    it += ['s_mul_i32 s84, %s, 21504' % S(sWave), 'v_add_u32 v190, s84, %s' % V(vL16), 'v_lshlrev_b32 v12, 16, v12']
    G.place(it, 4 * 32)
    wl = []
    for c in range(7):
        for bb in range(1, 4):
            w = mk('ds_write_b128 %s, %s offset:%d' % (V(28 + bb), V(acc + 16 * c + 4 * bb, 4), 1024 * c), tok=tr)
            gp = 4 * (105 + c) + 4 + bb
            if gp < len(G.m):
                G.put(gp, w)
            else:
                wl.append(w)
    G.emit(g)
    stamp(g, 'p2e')
    m, left = spread(wl, bgA, vgap=0)
    g.extend(m + left)
    g.wait(tr)
    g.I('s_barrier')
    stamp(g, 'red')
    for c in range(7):
        for bb in range(1, 4):
            g.I('ds_read_b128 %s, v190 offset:%d' % (V(acc + 16 * c + 4 * bb, 4), (bb - 1) * 7168 + 1024 * c))
    th = Tok('h')
    vH = 176
    main = []
    for c in range(7):
        a = acc + 16 * c
        for k in range(2):
            main.append('v_pk_add_f32 %s, %s, %s op_sel_hi:[1,0]' % (V(a + 2 * k, 2), V(a + 2 * k, 2), V(12, 2)))
    main += ['s_mul_i32 s84, %s, 28' % S(sFr), 's_mul_i32 s85, %s, 7' % S(sJ), 's_lshr_b32 s85, s85, 1', 's_add_u32 s84, s84, s85',
             's_lshl_b32 s84, s84, 10', 's_add_u32 s84, s84, 0x%x' % WS_H]
    for c in range(7):
        a = acc + 16 * c
        for k in range(2):
            main.append('v_pk_add_f32 %s, %s, %s' % (V(a + 2 * k, 2), V(a + 2 * k, 2), V(a + 4 + 2 * k, 2)))
            main.append('v_pk_add_f32 %s, %s, %s' % (V(a + 8 + 2 * k, 2), V(a + 8 + 2 * k, 2), V(a + 12 + 2 * k, 2)))
        for k in range(2):
            main.append('v_pk_add_f32 %s, %s, %s' % (V(a + 2 * k, 2), V(a + 2 * k, 2), V(a + 8 + 2 * k, 2)))
        for k in range(2):
            main.append('v_pk_mul_f32 %s, %s, %s' % (V(a + 2 * k, 2), V(a + 2 * k, 2), V(vZf + 4 * c + 2 * k, 2)))
        for k in range(2):
            main.append('v_cvt_pk_bf16_f32 %s, %s, %s' % (V(vH + 2 * c + k), V(a + 2 * k), V(a + 2 * k + 1)))
    m, bgB = spread([mk(x) for x in main], bgB, vgap=opt('vge', 60))
    g.extend(m)
    lo, le = lab('L_hodd'), lab('L_hend')
    g.I('s_bitcmp1_b32 %s, 0' % S(sJ))
    g.I('s_nop 1')
    g.I('s_cbranch_scc1 %s' % lo)
    for k in range(3):
        g.I('buffer_store_dwordx4 %s, %s, %s, s84 offen offset:%d sc1' % (V(vH + 4 * k, 4), V(vL16), sWS, 1024 * k), tok=th)
    g.I('buffer_store_dwordx2 %s, %s, %s, s84 offen offset:3072 sc1' % (V(vH + 12, 2), V(vL16), sWS), tok=th)
    g.I('s_branch %s' % le)
    g.label(lo)
    g.I('buffer_store_dwordx2 %s, %s, %s, s84 offen offset:8 sc1' % (V(vH, 2), V(vL16), sWS), shadow=True)
    for k in range(3):
        g.I('buffer_store_dwordx4 %s, %s, %s, s84 offen offset:%d sc1' % (V(vH + 2 + 4 * k, 4), V(vL16), sWS, 1024 * (k + 1)), shadow=True)
    g.label(le)
    stamp(g, 'hst')
    g.I('s_barrier')
    acc3 = 64
    hbuf = [V(128 + 4 * i, 4) for i in range(12)] + [A(176 + 4 * i, 4) for i in range(16)]
    xa = ['v_and_b32 v13, 15, v0', 'v_lshlrev_b32 v13, 10, v13', 'v_bfe_u32 v14, v0, 4, 1', 'v_lshl_add_u32 v13, v14, 5, v13',
          'v_bfe_u32 v14, v0, 5, 1', 'v_lshl_add_u32 v13, v14, 4, v13', 's_lshl_b32 %s, %s, 14' % (S(sWm), S(sFr)),
          's_lshl_b32 s84, %s, 7' % S(sJ), 's_add_u32 %s, %s, s84' % (S(sWm), S(sWm))]
    for bb in range(4):
        xa += ['s_mul_i32 s84, %s, %d' % (S(sFr + bb), 28 * 1024), 'v_add_u32 %s, s84, %s' % (V(14 + bb), V(vL16))]
    m, bgB = spread([mk(x) for x in xa], bgB, vgap=30)
    g.extend(m + bgB)
    g.extend(w3_read(4) + w3_issue(8) + w3_read(5) + w3_issue(9))
    g.extend(flag_items([th], WS_HF, sTb, sJ))
    stamp(g, 'hfl')
    G = Gaps()
    for k in range(4):
        for bb in range(4):
            for c in range(4):
                d = V(acc3 + 16 * c + 4 * bb, 4)
                G.add(mfma(d, A(wreg(k) + 4 * c, 4), obuf[4 * k + bb], d if k else '0'))
    gi = G.place(w3_read(6) + w3_issue(10) + flat(['buffer_load_dwordx4 v[32:35], v13, %s, %s offen' % (sX, S(sWm)),
                                                   'buffer_load_dwordx4 v[36:39], v13, %s, %s offen offset:64' % (sX, S(sWm))]),
                 0, vspace=2, cap=12)
    gi = G.place(w3_read(7) + w3_read(8) + w3_read(9), gi, cap=12)
    G.emit(g)
    stamp(g, 'ome')
    hld = ['s_lshl_b32 s83, %s, 2' % S(sTb), 's_add_u32 s83, s83, %s' % S(sWave), 's_lshl_b32 s83, s83, 8',
           's_add_u32 s83, s83, 0x%x' % WS_HF, 'buffer_load_dwordx4 v[8:11], v6, %s, s83 offen sc1' % sWS]
    g.I('\n'.join(hld))
    g.extend(w3_read(10))
    g.extend(poll_items([hld], [8, 9, 10, 11], 12))
    stamp(g, 'hgo')

    def hload(k):
        out = []
        for bb in range(4):
            out.append(mk('buffer_load_dwordx4 %s, %s, %s, %s offen offset:%d sc1' % (hbuf[4 * (k - 4) + bb], V(14 + bb), sWS, S(sRho2 if k < 8 else sRbl), 1024 * (k & 3))))
        return out

    G = Gaps()
    for k in range(4, 11):
        for bb in (range(4) if k < 10 else (1, 2, 3, 0)):
            for c in range(4):
                d = V(acc3 + 16 * c + 4 * bb, 4)
                G.add(mfma(d, A(wreg(k) + 4 * c, 4), hbuf[4 * (k - 4) + bb], d))
    g.extend(touch(27, sWS, S(sRho2), (1 << (28 * no)) - 1, sc1=True))
    HL = opt('hl', 3)
    for k in range(4, 4 + HL):
        g.extend(hload(k))
    gi = 0
    for k in range(4 + HL, 11):
        gi = G.place(hload(k), max(gi, 16 * (k - 4 - HL)), vspace=3, cap=12)
    tr3 = Tok('red3')
    it = []
    for bb in range(1, 4):
        it += ['s_add_u32 s84, %s, %d' % (S(sWave), bb), 's_and_b32 s84, s84, 3', 's_mul_i32 s84, s84, 12288',
               's_add_u32 s84, s84, %d' % ((bb - 1) * 4096), 'v_add_u32 %s, s84, %s' % (V(28 + bb), V(vL16))]
    it += ['s_mul_i32 s84, %s, 12288' % S(sWave), 'v_add_u32 v7, s84, %s' % V(vL16)]
    G.place(it, gi + 1)
    wl = []
    for j, bb in enumerate((1, 2, 3)):
        for c in range(4):
            w = mk('ds_write_b128 %s, %s offset:%d' % (V(28 + bb), V(acc3 + 16 * c + 4 * bb, 4), 1024 * c), tok=tr3)
            gp = 96 + 4 * j + c + 4
            if gp < len(G.m):
                G.put(gp, w)
            else:
                wl.append(w)
    G.emit(g)
    stamp(g, 'p3e')
    g.extend(wl)
    for k in range(8):
        g.I('v_lshlrev_b32 %s, 16, %s' % (V(40 + 2 * k), V(32 + k)))
        g.I('v_and_b32 %s, 0xffff0000, %s' % (V(41 + 2 * k), V(32 + k)))
    g.wait(tr3)
    g.I('s_barrier')
    for c in range(4):
        for bb in range(1, 4):
            g.I('ds_read_b128 %s, v7 offset:%d' % (V(acc3 + 16 * c + 4 * bb, 4), (bb - 1) * 4096 + 1024 * c))
    for pr in range(2):
        for c in (2 * pr, 2 * pr + 1):
            a = acc3 + 16 * c
            for k in range(2):
                g.I('v_pk_add_f32 %s, %s, %s' % (V(a + 2 * k, 2), V(a + 2 * k, 2), V(a + 4 + 2 * k, 2)))
                g.I('v_pk_add_f32 %s, %s, %s' % (V(a + 8 + 2 * k, 2), V(a + 8 + 2 * k, 2), V(a + 12 + 2 * k, 2)))
        for c in (2 * pr, 2 * pr + 1):
            a = acc3 + 16 * c
            for k in range(2):
                g.I('v_pk_add_f32 %s, %s, %s' % (V(a + 2 * k, 2), V(a + 2 * k, 2), V(a + 8 + 2 * k, 2)))
        a0, a1 = acc3 + 32 * pr, acc3 + 32 * pr + 16
        for r in range(4):
            g.I('v_permlane16_swap_b32 %s, %s' % (V(a0 + r), V(a1 + r)))
        for k in range(4):
            src = (a0 if k < 2 else a1) + 2 * (k & 1)
            g.I('v_pk_add_f32 %s, %s, %s' % (V(src, 2), V(src, 2), V(40 + 8 * pr + 2 * k, 2)))
        for k in range(4):
            src = (a0 if k < 2 else a1) + 2 * (k & 1)
            g.I('v_cvt_pk_bf16_f32 %s, %s, %s' % (V(32 + 4 * pr + k), V(src), V(src + 1)))
        g.I('buffer_store_dwordx4 %s, v13, %s, %s offen offset:%d' % (V(32 + 4 * pr, 4), sOUT, S(sWm), 64 * pr))
    if STAMP:
        g.raw('s_memtime s[98:99]')
        g.raw('s_memrealtime s[100:101]')
        g.I('s_waitcnt lgkmcnt(0)')
        g.I('s_lshl_b32 s82, s2, 2')
        g.I('s_add_u32 s82, s82, %s' % S(sWave))
        g.I('s_lshl_b32 s82, s82, 6')
        g.I('s_add_u32 s82, s82, 0x%x' % WS_DBG)
        for i in range(8):
            g.I('v_mov_b32 %s, %s' % (V(64 + i), S(sSt + 2 * i)))
        g.I('v_mov_b32 v72, s98\nv_mov_b32 v73, s98\nv_mov_b32 v74, s100\nv_mov_b32 v75, s1')
        for i in range(76, 80):
            g.I('v_mov_b32 v%d, 0' % i)
        g.I('s_mov_b64 exec, 1')
        for i in range(4):
            g.I('buffer_store_dwordx4 %s, off, %s, s82 offset:%d' % (V(64 + 4 * i, 4), sWS, 16 * i))
    if opt('dbgspan', 0):
        g.raw('s_memrealtime s[100:101]')
        g.I('s_waitcnt lgkmcnt(0)')
        g.I('s_not_b32 s1, s1')
        g.I('v_mov_b32 v64, s100\nv_mov_b32 v65, s1')
        g.I('s_mov_b64 exec, 1')
        g.I('buffer_atomic_umax v64, off, %s, 0 offset:4' % sDBG)
        g.I('buffer_atomic_umax v65, off, %s, 0 offset:8' % sDBG)
    g.label('L_end')
    g.I('s_endpgm')
    return g


def main():
    out = []
    hdr = open('parallel_sum__sliding_local_dilated__mixer_gmlp__prompt.s.ref').read().split('\n')
    for l in hdr:
        if l.startswith('; @launch'):
            break
        out.append(l)
    out.append('; @launch grid=(256,1,1) block=(256,1,1) lds=%d' % LDS_BYTES)
    out.append('.amdgcn_target "amdgcn-amd-amdhsa--gfx950"\n.text\n.globl %s\n.p2align 8\n.type %s,@function\n%s:' % (KN, KN, KN))
    stats = {}
    lines, st0 = finish(prologue(), None, stats)
    out += lines
    lines, st1 = finish(p1z_head(), st0, stats)
    out += lines
    for n1, l in ((8, None), (6, 'L_p1z6')):
        if l:
            out.append(l + ':')
        lines, st = finish(p1z(n1), st1, stats)
        assert not [o for o in st.vm if o.kind != 'vst'], 'loads pending at join'
        out += lines
    out.append('L_p1q:')
    lines, st = finish(p1q(), st0, stats)
    assert not [o for o in st.vm if o.kind != 'vst' and o.wr]
    out += lines
    lines, st = finish(p23(), None, stats)
    out += lines
    out += tail_code
    out.append(""".section .rodata,"a"
.p2align 6
.amdhsa_kernel %s
  .amdhsa_next_free_vgpr 512
  .amdhsa_next_free_sgpr 102
  .amdhsa_accum_offset 256
  .amdhsa_group_segment_fixed_size 0
  .amdhsa_kernarg_size 88
  .amdhsa_user_sgpr_count 2
  .amdhsa_user_sgpr_kernarg_segment_ptr 1
  .amdhsa_system_sgpr_workgroup_id_x 1
.end_amdhsa_kernel""" % KN)
    fn = [a for a in sys.argv[1:] if not a.startswith('--')][0]
    open(fn, 'w').write('\n'.join(out) + '\n')
    print('stats', stats, 'lines', len(out), file=sys.stderr)


main()
```

```python
import sys, struct, math
from asmlib import *

KN = "parallel_sum__sliding_local_dilated__mixer_gmlp__prompt_kernel"
STAMP = '--stamp' in sys.argv


def opt(name, default):
    for a in sys.argv:
        if a.startswith('--%s=' % name):
            return type(default)(a.split('=')[1])
    return default


WS_ZF, WS_Z1F, WS_OF, WS_HF = 0x4000, 0x8000, 0xC000, 0x10000
WS_STA, WS_STB = 0x20000, 0x60000
WS_Z2N, WS_Z1R, WS_O, WS_H = 0x100000, 0x500000, 0x900000, 0xB00000
WS_DBG = 0xF00000
WS_SIZE = 0x1000000
LZ_MISC, LZ_PRIV, LZ_NSLOT = 65536, 73728, 5
LQ_HALO, LQ_MISC, LQ_PRIV, LQ_NSLOT = 73728, 90112, 98304, 4
L3_PRIV = 98304
LDS_BYTES = 163840
MAPM = opt('mapm', 1)
QHELP = opt('qh', 1) and MAPM
ROT2 = opt('rot2', 1) and QHELP
W3AT = opt('w3at', 'att')
NJ = opt('nj', 4)
NT = 32 // NJ
TCH = [189]
PHI = 0x9E3779B9
SPIN = 1 << 15


def f2u(x):
    return struct.unpack('<I', struct.pack('<f', x))[0]


def V(i, n=1):
    return 'v%d' % i if n == 1 else 'v[%d:%d]' % (i, i + n - 1)


def A(i, n=1):
    return 'a%d' % i if n == 1 else 'a[%d:%d]' % (i, i + n - 1)


def S(i, n=1):
    return 's%d' % i if n == 1 else 's[%d:%d]' % (i, i + n - 1)


sXw, sX, sW, sS, sWS, sWO, sWOUT, sOUT, sB, sDBG = (S(i, 4) for i in (4, 8, 12, 16, 20, 24, 28, 32, 36, 40))
sWave, sRb, sCg, sRbl = 44, 45, 46, 47
sDA, sDB = 64, 66
sTbl, sRho3 = 68, 69
sK1 = 72
K1_NEXT = ['s_add_u32 s72, s72, 128', 's_and_b32 s72, s72, 0x380']
sTb, sJ, sK2, sTag, sWm, sWd, sRho2, sPriv = 70, 71, 72, 73, 74, 75, 76, 77
sFr = 78
sLN = 86
sLN2 = 88
sGE = 90
sPar = 92
sB2 = 94
sCnt = 96
sAcc = 98
sSt1, sSt2 = 100, 101
sJl = 3
sSt = 48

vLane, vL16, vRd0, vRd1 = 0, 1, 2, 3
vXa, vSa, vWa, vTr = 4, 8, 12, 16
vOnes, vTag = 24, 28
vB = 32
NB = 8


def xreg(i, b):
    return A(128 + 8 * i + 4 * b, 4)


def sreg(i, bb):
    if i < 8:
        return A(16 * i + 4 * bb, 4)
    if i < 12:
        return V(192 + 16 * (i - 8) + 4 * bb, 4)
    return A(128 + 16 * (i - 12) + 4 * bb, 4)


def mfma(d, a, b, c):
    return 'v_mfma_f32_16x16x32_bf16 %s, %s, %s, %s' % (d, a, b, c)


SLIST = opt('sset', 'o0,p1e,pub,p2,p2go,p2e,hgo,end').split(',')
assert len(SLIST) <= 7 or True


def stamp_ins(name):
    if STAMP and name in SLIST[:7]:
        return [Ins('s_memtime %s' % S(sSt + 2 + 2 * SLIST.index(name), 2), raw=True)]
    return []


def stamp(seg, name):
    seg.extend(stamp_ins(name))


uid = [0]


def lab(p):
    uid[0] += 1
    return '%s_%d' % (p, uid[0])


tail_code = []


def prologue():
    g = Seg('pro')
    if STAMP or opt('dbgspan', 0):
        g.raw('s_memtime s[98:99]')
        g.raw('s_memrealtime s[96:97]')
    g.I('s_cmp_ge_u32 s2, 256')
    g.I('s_cbranch_scc1 L_end')
    g.I('s_load_dwordx16 s[48:63], s[0:1], 0')
    g.I('s_load_dwordx4 s[64:67], s[0:1], 64')
    g.I('s_load_dwordx2 s[68:69], s[0:1], 80')
    g.I('v_lshrrev_b32 v29, 6, v0')
    g.I('v_and_b32 v0, 63, v0')
    g.I('v_readfirstlane_b32 %s, v29' % S(sWave))
    g.I('s_and_b32 s82, s2, 7')
    g.I('s_lshr_b32 s83, s2, 3')
    if opt('cpf', 1):
        g.I('s_getpc_b64 s[36:37]')
        g.raw('L_pc0:')
        g.I('s_mov_b32 s38, L_codeend-L_pc0')
        g.I('s_mov_b32 s39, 0x20000')
        g.I('s_lshl_b32 s84, s83, 2')
        g.I('s_add_u32 s84, s84, %s' % S(sWave))
        g.I('s_lshl_b32 s84, s84, 7')
        g.I('v_lshlrev_b32 v30, 14, v0')
        g.I('buffer_load_dword v255, v30, s[36:39], s84 offen ; touch')
    if MAPM:
        g.I('s_lshr_b32 s84, s82, 1')
        g.I('s_lshl_b32 s84, s84, 2')
        g.I('s_bfe_u32 %s, s83, 0x20002' % S(sRbl))
        g.I('s_add_u32 %s, s84, %s' % (S(sRb), S(sRbl)))
        g.I('s_and_b32 s84, s82, 1')
        g.I('s_lshl_b32 s84, s84, 2')
        g.I('s_and_b32 s85, s83, 3')
        g.I('s_add_u32 %s, s84, s85' % S(sCg))
        g.I('s_lshr_b32 s82, s83, 4')
        g.I('s_lshl_b32 s84, s82, 2')
        g.I('s_add_u32 s85, s85, s84')
        g.I('s_lshl_b32 s84, %s, 1' % S(sRbl))
        g.I('s_add_u32 s85, s85, s84')
        g.I('s_lshl_b32 s82, s82, 2')
    else:
        g.I('s_and_b32 s84, s82, 3')
        g.I('s_lshl_b32 s84, s84, 2')
        g.I('s_lshr_b32 s85, s83, 3')
        g.I('s_add_u32 %s, s84, s85' % S(sRb))
        g.I('s_and_b32 %s, s83, 7' % S(sCg))
        g.I('s_mov_b32 %s, s85' % S(sRbl))
        g.I('s_lshl_b32 s85, s85, 1')
        g.I('s_add_u32 s85, s85, %s' % S(sCg))
    g.I('s_and_b32 s85, s85, 7')
    g.I('s_lshl_b32 %s, s85, 7' % S(sK1))
    g.I('v_lshrrev_b32 v29, 3, v0')
    g.I('v_lshrrev_b32 v30, 4, v0')
    g.I('v_and_b32 v31, 7, v0')
    g.I('v_xor_b32 v31, v31, v30')
    g.I('v_lshlrev_b32 v31, 4, v31')
    g.I('v_lshl_add_u32 v4, v29, 10, v31')
    g.I('v_xor_b32 v5, 64, v4')
    g.I('v_add_u32 v5, %d, v5' % (8192 - 1024))
    g.I('v_add_u32 v6, %d, v4' % (2 * (8192 - 1024)))
    g.I('v_add_u32 v7, %d, v5' % (2 * (8192 - 1024)))
    g.I('s_lshl_b32 s84, %s, 17' % S(sRb))
    g.I('s_lshl_b32 s85, %s, 15' % S(sWave))
    g.I('s_add_u32 %s, s84, s85' % S(sWd))
    g.I('s_cmp_ge_u32 s82, 4')
    g.I('s_cbranch_scc1 L_p1q')
    return g


def srd_first(g, wlo, whi, wsize, wofs):
    g.I('s_waitcnt lgkmcnt(0)')
    g.I('s_add_u32 s4, s48, %s' % S(sWd))
    g.I('s_addc_u32 s5, s49, 0')
    g.I('s_sub_u32 s6, 0x200000, %s' % S(sWd))
    g.I('s_mov_b32 s7, 0x20000')
    if wofs is None:
        g.I('s_mov_b32 s12, s%d\ns_mov_b32 s13, s%d\ns_mov_b32 s14, 0x%x' % (wlo, whi, wsize))
    else:
        g.I('s_add_u32 s12, s%d, %s\ns_addc_u32 s13, s%d, 0\ns_sub_u32 s14, 0x%x, %s' % (wlo, wofs, whi, wsize, wofs))
    g.I('s_mov_b32 s15, 0x20000')


def setup_rest(isq=False):
    o = []
    o += ['s_mov_b32 s20, s68', 's_mov_b32 s21, s69', 's_mov_b32 s22, 0x%x' % WS_SIZE, 's_mov_b32 s23, 0x20000']
    o += ['buffer_load_dword %s, off, %s, 0 sc1' % (V(vTag), sWS)]
    o += ['s_mov_b32 s8, s48', 's_mov_b32 s9, s49', 's_mov_b32 s10, 0x200000', 's_mov_b32 s11, 0x20000']
    o += ['s_mov_b32 s24, s52', 's_mov_b32 s25, s53', 's_mov_b32 s26, 0x80000', 's_mov_b32 s27, 0x20000']
    o += ['s_mov_b32 s28, s62', 's_mov_b32 s29, s63', 's_mov_b32 s30, 0xe0000', 's_mov_b32 s31, 0x20000']
    o += ['s_mov_b32 s32, s64', 's_mov_b32 s33, s65', 's_mov_b32 s34, 0x200000', 's_mov_b32 s35, 0x20000']
    o += ['s_mov_b32 s36, s60', 's_mov_b32 s37, s61', 's_mov_b32 s38, 0x1000', 's_mov_b32 s39, 0x20000']
    o += ['s_mov_b32 s40, s66', 's_mov_b32 s41, s67', 's_mov_b32 s42, 256', 's_mov_b32 s43, 0x20000']
    if NJ == 4:
        o += ['s_and_b32 s84, s2, 7', 's_lshr_b32 s85, s2, 3', 's_lshr_b32 %s, s85, 2' % S(sTbl), 's_and_b32 %s, s85, 3' % S(sJl),
              's_lshr_b32 s85, s84, 1', 's_lshl_b32 s85, s85, 3', 's_add_u32 %s, s85, %s' % (S(sTb), S(sTbl)),
              's_and_b32 s84, s84, 1', 's_lshl_b32 s84, s84, 2', 's_add_u32 %s, s84, %s' % (S(sJ), S(sJl))]
    else:
        o += ['s_and_b32 s84, s2, 7', 's_lshr_b32 %s, s2, 6' % S(sTbl), 's_lshr_b32 s85, s2, 3', 's_and_b32 %s, s85, 7' % S(sJl),
              's_lshl_b32 s84, s84, 2', 's_add_u32 %s, s84, %s' % (S(sTb), S(sTbl)), 's_mov_b32 %s, %s' % (S(sJ), S(sJl))]
    if ROT2:
        o += ['s_and_b32 s76, %s, 3' % S(sTbl), 's_lshl_b32 s76, s76, 8']
    else:
        o += ['s_lshl_b32 s76, %s, %d' % (S(sTbl), 7 if NT == 8 else 8)]
    QH = QHELP and isq
    o += ['s_lshl_b32 s84, %s, 18' % S(sTb)] + (['s_sub_u32 s84, s84, 0x100000'] if QH else [])
    o += ['s_lshl_b32 s85, %s, 10' % S(sWave), 's_add_u32 s84, s84, s85',
          ['s_sub_u32 s16, s58, 3072', 's_subb_u32 s17, s59, 0'], ['s_add_u32 s16, s16, s84', 's_addc_u32 s17, s17, 0'],
          's_sub_u32 s18, 0x%x, s84' % (0x800000 + 3072), 's_mov_b32 s19, 0x20000']
    if STAMP or opt('dbgspan', 0):
        o += ['s_mov_b32 s48, s98', 's_mov_b32 s1, s96']
    o += ['s_and_b32 s84, %s, 2' % S(sWave), 's_lshl_b32 %s, s84, 16' % S(sDA), 's_xor_b32 %s, %s, 0x20000' % (S(sDA + 1), S(sDA)),
          's_add_u32 s85, %s, 1' % S(sWave), 's_and_b32 s84, s85, 2', 's_lshl_b32 %s, s84, 16' % S(sDB),
          's_xor_b32 %s, %s, 0x20000' % (S(sDB + 1), S(sDB))]
    o += ['v_lshrrev_b32 v29, 3, v0', 'v_lshrrev_b32 v30, 4, v0', 'v_and_b32 v31, 7, v0', 'v_xor_b32 v31, v31, v30',
          'v_lshlrev_b32 v31, 4, v31', 'v_lshl_add_u32 v31, v29, 12, v31', 'v_xor_b32 v30, 64, v31',
          's_and_b32 s84, %s, 1' % S(sWave), 's_lshl_b32 s84, s84, 16'] + (['s_add_u32 s84, s84, 0x100000'] if QH else []) + [
          's_xor_b32 s85, s84, 0x10000',
          's_add_u32 s83, s84, 3072', 'v_add_u32 v8, s83, v31', 's_add_u32 s83, s84, %d' % (8 * 4096 + 2048), 'v_add_u32 v9, s83, v30',
          's_add_u32 s83, s85, 1024', 'v_add_u32 v10, s83, v31', 's_add_u32 s83, s85, %d' % (8 * 4096), 'v_add_u32 v11, s83, v30']
    o += ['v_lshlrev_b32 %s, 4, v0' % V(vL16), 'v_and_b32 v29, 15, v0', 'v_lshrrev_b32 v30, 4, v0', 'v_lshrrev_b32 v31, 1, v29',
          'v_xor_b32 v31, v31, v30', 'v_lshlrev_b32 v31, 4, v31', 'v_lshl_add_u32 v31, v29, 7, v31',
          'v_add_u32 v2, %s, v31' % S(sPriv), 'v_xor_b32 v3, 64, v2']
    c1 = -2.0 * math.sqrt(2.0 / math.pi) * math.log2(math.e)
    for r, val in ((sLN, f2u(1.0 / 512)), (sLN + 1, f2u(1e-5)), (sLN2, f2u(1.0 / 896)), (sLN2 + 1, f2u(1e-5)),
                   (sGE, f2u(c1 * 0.044715)), (sGE + 1, f2u(c1)), (sPar, 0xaaaaaaaa), (sPar + 1, 0xaaaaaaaa),
                   (sB2, 0xcccccccc), (sB2 + 1, 0xcccccccc)):
        o.append('s_mov_b32 %s, 0x%x' % (S(r), val))
    for i in range(4):
        o.append('v_mov_b32 %s, 0x3f803f80' % V(vOnes + i))
    return o


def masked(mask, ins):
    if mask == -1:
        return [mk(ins)]
    lo, hi = mask & 0xffffffff, mask >> 32
    if hi == 0 and lo == 0xffffffff:
        pre = ['s_mov_b32 exec_hi, 0']
    elif hi == 0 and lo < 0x80000000:
        pre = ['s_mov_b64 exec, 0x%x' % lo]
    else:
        pre = ['s_mov_b32 exec_hi, 0x%x' % hi] if lo == 0xffffffff else ['s_mov_b32 exec_lo, 0x%x' % lo, 's_mov_b32 exec_hi, 0x%x' % hi]
    return [mk(pre + [ins, 's_mov_b64 exec, -1'])]


def touch(vaddr, srd, soff, mask=-1, imm=0, sc1=False, nt=0):
    return masked(mask, 'buffer_load_dword %s, %s, %s, %s offen%s%s%s ; touch' % (V(TCH[0]), V(vaddr), srd, soff, ' offset:%d' % imm if imm else '', ' sc1' if sc1 else '', ' nt' if nt else ''))


def s_touch_addr(v):
    nr = 64 // NJ
    sh = nr.bit_length() - 1
    return ['v_and_b32 v29, %d, v0' % (nr - 1), 's_lshl_b32 s84, %s, %d' % (S(sJl), sh), 'v_add_u32 v29, s84, v29',
            'v_lshlrev_b32 v29, 12, v29', 'v_lshrrev_b32 v30, %d, v0' % sh, 'v_lshl_add_u32 v30, v30, 7, s76',
            'v_and_b32 v30, 0x380, v30', 'v_add_u32 %s, v29, v30' % V(v)]


def s_touch(v, t):
    if t >= 8 // NJ or opt('nost', 0):
        return []
    return ([mk('v_xor_b32 %s, 512, %s' % (V(v), V(v)))] if t else []) + touch(v, sS, '0', imm=3072, nt=opt('nts', 0))


def w3_touches(v):
    sh = sRbl if QHELP else sTbl
    a, b = (32, 56) if QHELP else (128 // NT, 224 // NT)
    o = ['s_lshl_b32 s84, %s, 7' % S(sJ), 'v_lshl_add_u32 %s, v0, 10, s84' % V(v),
         's_mul_i32 s84, %s, %d' % (S(sh), a * 1024), 's_lshl_b32 s85, %s, 17' % S(sWave), 's_add_u32 s84, s84, s85']
    o = [mk(x) for x in o] + touch(v, sWO, 's84', (1 << a) - 1)
    o += [mk(x) for x in ['s_mul_i32 s84, %s, %d' % (S(sh), b * 1024), 's_mul_i32 s85, %s, %d' % (S(sWave), 224 * 1024), 's_add_u32 s84, s84, s85']]
    return o + touch(v, sWOUT, 's84', (1 << b) - 1)


def keep_lanes(v, n):
    return ['v_cmp_gt_u32 vcc, %d, v0' % n, 'v_mov_b32 v30, 0x40000000', 's_nop 0', 'v_cndmask_b32 %s, v30, %s, vcc' % (V(v), V(v))]


def x_touch_addr(v):
    return ['s_lshl_b32 s84, %s, 2' % S(sCg), 'v_add_u32 v29, s84, v0', 'v_lshlrev_b32 %s, 10, v29' % V(v)] + keep_lanes(v, 4)


def tag_publish():
    return ['v_add_u32 %s, 0x%x, %s' % (V(vTag), PHI, V(vTag)),
            'v_cmp_eq_u32 vcc, 0, %s' % V(vTag),
            'v_mov_b32 v29, 0x%x' % PHI,
            's_lshl_b32 s85, s2, 2',
            'v_cndmask_b32 %s, %s, v29, vcc' % (V(vTag), V(vTag)),
            's_or_b32 s85, s85, %s' % S(sWave),
            's_lshl_b32 s85, s85, 6',
            'v_or_b32 v29, s85, v0',
            'v_cmp_eq_u32 vcc, 0, v29',
            'v_mov_b32 v30, 0x7ffffff0',
            's_nop 0',
            'v_cndmask_b32 v29, v30, 0, vcc',
            'buffer_store_dword %s, v29, %s, 0 offen sc1' % (V(vTag), sWS),
            'buffer_store_dword %s, v29, %s, 0 offen sc1' % (V(vTag), sDBG)]


TAG_FETCH = 'buffer_load_dword %s, off, %s, 0 sc1' % (V(vTag), sDBG)


def tag_check(g):
    ls, lr = lab('L_tagslow'), lab('L_tagret')
    g.I('v_readfirstlane_b32 %s, %s' % (S(sTag), V(vTag)))
    g.I('s_cmp_eq_u32 %s, 0' % S(sTag))
    g.I('s_cbranch_scc1 %s' % ls)
    g.label(lr)
    tail_code.append("""%s:
s_mov_b32 s%d, %d
%s_l:
s_sleep 1
buffer_load_dword v%d, off, %s, 0 sc1
s_waitcnt vmcnt(0)
v_readfirstlane_b32 s%d, v%d
s_sub_u32 s%d, s%d, 1
s_cbranch_scc1 %s
s_cmp_eq_u32 s%d, 0
s_cbranch_scc1 %s_l
s_branch %s""" % (ls, sCnt, SPIN, ls, vTag, sDBG, sTag, vTag, sCnt, sCnt, lr, sTag, ls, lr))


def poll_items(alts, tagregs, tmp):
    ls, lr = lab('L_pslow'), lab('L_pret')
    chk = []
    regs = list(tagregs)
    chk.append('v_xor_b32 %s, %s, %s' % (V(tmp), V(regs[0]), V(vTag)))
    for r in regs[1:]:
        chk.append('v_xor_b32 %s, %s, %s' % (V(r), V(r), V(vTag)))
    rest = regs[1:]
    while rest:
        if len(rest) >= 2:
            chk.append('v_or3_b32 %s, %s, %s, %s' % (V(tmp), V(tmp), V(rest[0]), V(rest[1])))
            rest = rest[2:]
        else:
            chk.append('v_or_b32 %s, %s, %s' % (V(tmp), V(tmp), V(rest[0])))
            rest = []
    chk.append('v_cmp_ne_u32 vcc, 0, %s' % V(tmp))
    items = [mk(c) for c in chk] + [[mk('s_cbranch_vccnz %s' % ls), Ins(lr + ':')]]
    t = ['%s:' % ls, 's_mov_b32 s%d, %d' % (sCnt, SPIN), '%s_l:' % ls]
    for k, loads in enumerate(alts):
        t += loads
        t += ['s_waitcnt vmcnt(0)'] + chk + ['s_nop 1', 's_cbranch_vccz %s' % lr]
    t += ['s_sleep 1', 's_sub_u32 s%d, s%d, 1' % (sCnt, sCnt), 's_cbranch_scc0 %s_l' % ls, 's_branch %s' % lr]
    tail_code.append('\n'.join(t))
    return items


def zflag_addr():
    return ['s_lshl_b32 s84, %s, 2' % S(sJ), 's_lshr_b32 s85, 0x76443200, s84', 's_and_b32 s85, s85, 15', 'v_mov_b32 v5, s85',
            's_lshr_b32 s85, 0x77543310, s84', 's_and_b32 s85, s85, 15', 'v_mov_b32 v6, s85',
            'v_cndmask_b32 v5, v5, v6, %s' % S(sPar, 2), 'v_lshlrev_b32 v5, 7, v5', 'v_bfe_u32 v6, v0, 1, 2',
            'v_lshl_add_u32 v6, v6, 10, v5', 's_lshl_b32 %s, %s, 12' % (S(sRho2), S(sWave)),
            's_add_u32 %s, %s, 0x%x' % (S(sRho2), S(sRho2), WS_ZF)]


ZF_LOAD = 'buffer_load_dwordx4 v[12:15], v6, %s, %s offen sc1' % (sWS, S(sRho2))


def flag_items(toks, base, i1, i2, xor=0):
    o = ['s_lshl_b32 s84, %s, 3' % S(i1)]
    if xor:
        o += ['s_xor_b32 s85, %s, %d' % (S(i2), xor), 's_add_u32 s84, s84, s85']
    else:
        o += ['s_add_u32 s84, s84, %s' % S(i2)]
    o += ['s_lshl_b32 s84, s84, 5', 's_add_u32 s84, s84, %s' % S(sWave), 's_lshl_b32 s84, s84, 2', 's_add_u32 s84, s84, 0x%x' % base]
    w = mk('s_waitcnt vmcnt(0)') if opt('fl0', 0) else mkwait(*toks)
    return [mk(x) for x in o] + [w, mk('buffer_store_dword %s, off, %s, s84 sc1' % (V(vTag), sWS))]


class Priv:
    def __init__(self, nslot):
        self.nslot = nslot
        self.dma, self.rd, self.slot = {}, {}, {}
        self.owner = {}
        self.cnt = 0
        self.pp = 0

    def issue(self, n):
        out = []
        sl = self.cnt % self.nslot
        self.cnt += 1
        if sl in self.owner:
            out.append(mkwait(self.rd[self.owner[sl]]))
        self.owner[sl] = n
        self.slot[n] = sl
        t = self.dma[n] = Tok('P%d' % n)
        out.append(mk('s_add_u32 m0, %s, %d' % (S(sPriv), sl * 4096)))
        if n < 8:
            for q in range(4):
                out.append(mk('buffer_load_dwordx4 %s, %s, %s offen offset:%d lds' % (V(vXa + q), sXw, S(sK1), 1024 * q), tok=t))
        else:
            h = (n - 8) & 1
            pp = (n - 8) >> 1
            if pp != self.pp:
                out.append(mk('s_add_u32 s76, s76, %d' % (((pp - self.pp) & 7) * 128)))
                out.append(mk('s_and_b32 s76, s76, 0x380'))
                self.pp = pp
            out.append(mk('s_add_u32 s82, %s, s76' % S(sDA + h)))
            out.append(mk('s_add_u32 s83, %s, s76' % S(sDB + h)))
            for q in range(4):
                out.append(mk('buffer_load_dwordx4 %s, %s, s%d offen offset:%d lds' % (V(vSa + q), sS, 82 + (q >> 1), 1024 * q), tok=t))
        return out

    def read(self, n):
        out = [mkwait(self.dma[n])]
        t = self.rd[n] = Tok('PR%d' % n)
        for e in range(2):
            for b in range(2):
                if n < 8:
                    dst = xreg(2 * n + e, b)
                else:
                    gi = n - 8
                    dst = sreg(2 * (gi >> 1) + e, 2 * (gi & 1) + b)
                out.append(mk('ds_read_b128 %s, %s offset:%d' % (dst, V(vRd0 + e), self.slot[n] * 4096 + b * 2048), tok=t))
        return out


def build_pass(uses, open_items, L=6):
    G = Gaps()
    first = []
    for u, (st, rds, ms) in enumerate(uses):
        base = vB + 4 * (u % NB)
        first.append(len(G.m))
        for m in ms:
            G.add(m.replace('%B', V(base, 4)))
    pre = []
    opened = {}
    toks = {}
    for u, (st, rds, ms) in enumerate(uses):
        base = vB + 4 * (u % NB)
        t = toks[u] = Tok('B%d' % u)
        r = [mk(rds[h] % V(base + 2 * h, 2), tok=t) for h in range(2)]
        if u < L:
            if st not in opened:
                opened[st] = -1
                pre += open_items(st)
            pre += r
        else:
            g0 = first[u - L]
            if st not in opened:
                opened[st] = g0
                for it in open_items(st):
                    G.put(g0, it)
            G.put(g0, r[0])
            G.put(g0 + 1, r[1])
    for u in range(0, len(uses) - 1, 2):
        G.before(first[u], mkwait(toks[u + 1]))
    return pre, G, first, opened


def row_stats(g, vSM, vSSd, n):
    for i in range(0, n, 2):
        g.I('v_pk_mul_f32 %s, %s, %s op_sel_hi:[1,0]' % (V(vSM + i, 2), V(vSM + i, 2), S(sLN, 2)))
    for i in range(0, n, 2):
        g.I('v_pk_mul_f32 %s, %s, %s op_sel_hi:[1,0]' % (V(vSSd + i, 2), V(vSSd + i, 2), S(sLN, 2)))
    for i in range(0, n, 2):
        g.I('v_pk_fma_f32 %s, %s, %s, %s neg_lo:[1,0,0] neg_hi:[1,0,0]' % (V(vSSd + i, 2), V(vSM + i, 2), V(vSM + i, 2), V(vSSd + i, 2)))
    for i in range(n):
        g.I('v_max_f32 %s, 0, %s' % (V(vSSd + i), V(vSSd + i)))
    for i in range(0, n, 2):
        g.I('v_pk_add_f32 %s, %s, %s op_sel:[0,1] op_sel_hi:[1,1]' % (V(vSSd + i, 2), V(vSSd + i, 2), S(sLN, 2)))
    for i in range(n):
        g.I('v_rsq_f32 %s, %s' % (V(vSSd + i), V(vSSd + i)))
    for i in range(0, n, 2):
        g.I('v_pk_mul_f32 %s, %s, %s' % (V(vSM + i, 2), V(vSM + i, 2), V(vSSd + i, 2)))


def to_lane_layout(src4, dst, vaddr, t0, t1):
    return ['v_cndmask_b32 %s, %s, %s, %s' % (V(t0), V(src4), V(src4 + 1), S(sPar, 2)),
            'v_cndmask_b32 %s, %s, %s, %s' % (V(t1), V(src4 + 2), V(src4 + 3), S(sPar, 2)),
            'v_cndmask_b32 %s, %s, %s, %s' % (V(t0), V(t0), V(t1), S(sB2, 2)),
            'ds_bpermute_b32 %s, %s, %s' % (V(dst), V(vaddr), V(t0))]


def gelu_pairs(pairs, tmp):
    st = [[] for _ in range(8)]
    for y, t in zip(pairs, tmp):
        Y, T = V(y, 2), V(t, 2)
        st[0].append('v_pk_mul_f32 %s, %s, %s' % (T, Y, Y))
        st[1].append('v_pk_fma_f32 %s, %s, %s, %s op_sel:[0,0,1] op_sel_hi:[1,0,1]' % (T, T, S(sGE, 2), S(sGE, 2)))
        st[2].append('v_pk_mul_f32 %s, %s, %s' % (T, T, Y))
        st[3].append('v_exp_f32 %s, %s' % (V(t), V(t)))
        st[3].append('v_exp_f32 %s, %s' % (V(t + 1), V(t + 1)))
        st[4].append('v_pk_add_f32 %s, %s, 1.0 op_sel_hi:[1,0]' % (T, T))
        st[5].append('v_rcp_f32 %s, %s' % (V(t), V(t)))
        st[5].append('v_rcp_f32 %s, %s' % (V(t + 1), V(t + 1)))
        st[6].append('v_pk_mul_f32 %s, %s, %s' % (Y, Y, T))
    return [x for s_ in st for x in s_]


def block_start(q, dst):
    return ['s_lshr_b32 s83, %s, 1' % q, 's_and_b32 s84, s83, 1', 's_lshl_b32 s84, s84, 1', 's_sub_u32 s84, 8, s84',
            's_and_b32 s85, %s, 1' % q, 's_mul_i32 s84, s84, s85', 's_mul_i32 s83, s83, 14', 's_add_u32 %s, s83, s84' % dst]


def p1z_head():
    g = Seg('p1zh')
    g.extend(block_start(S(sCg), S(sSt1)))
    g.I('s_and_b32 s82, %s, 0xfc' % S(sSt1))
    g.I('s_lshl_b32 s82, s82, 5')
    g.I('s_add_u32 s82, s82, 1792')
    g.I('s_mul_i32 %s, %s, %d' % (S(sPriv), S(sWave), LZ_NSLOT * 4096))
    g.I('s_add_u32 %s, %s, %d' % (S(sPriv), S(sPriv), LZ_PRIV))
    g.I('s_lshl_b32 %s, %s, 12' % (S(sWm), S(sWave)))
    g.I('v_bfe_u32 v29, v0, 1, 3')
    g.I('v_xor_b32 v29, v29, v30')
    g.I('v_lshlrev_b32 v29, 5, v29')
    g.I('v_and_b32 v31, 1, v0')
    g.I('v_lshl_or_b32 v29, v31, 4, v29')
    g.I('s_lshl_b32 s83, %s, 4' % S(sWave))
    g.I('v_add_u32 v30, s83, v30')
    g.I('v_mul_u32_u24 v30, 3584, v30')
    g.I('v_add_u32 v12, v30, v29')
    g.I('v_add_u32 v13, %d, v12' % (4 * 3584 - 1024))
    g.I('v_xor_b32 v29, 128, v29')
    g.I('v_add_u32 v14, v30, v29')
    g.I('v_add_u32 v15, %d, v14' % (12 * 3584 - 3072))
    g.I('v_add_u32 v14, %d, v14' % (8 * 3584 - 2048))
    srd_first(g, 56, 57, 0x1c0000, 's82')
    TCH[0] = 189
    g.I('s_mov_b32 %s, s82' % S(sWd))
    g.I('s_lshr_b32 s83, %s, 1' % S(sCg))
    g.I('s_xor_b32 s83, s83, %s' % S(sCg))
    g.I('s_bitcmp1_b32 s83, 0')
    g.I('s_cbranch_scc1 L_p1z6')
    return g


def p1z(n1):
    n2 = 14 - n1
    g = Seg('p1z%d' % n1)
    P = Priv(LZ_NSLOT)
    acc1 = 64
    acc2 = 64 + 8 * n1
    vSM, vSS, vCS = acc2, acc2 + 8, acc2 + 16
    vCS2, vRt = 176, 184
    vZo = 4
    wtok = {}

    def w_issue(s):
        t = wtok[s] = Tok('W%d' % s)
        out = []
        if s == 8:
            out += [mk(['s_sub_u32 s12, s12, %s' % S(sWd), 's_subb_u32 s13, s13, 0']), mk('s_add_u32 s14, s14, %s' % S(sWd))]
        out += [mk('s_add_u32 m0, %s, %d' % (S(sWm), (s & 3) * 16384)), mk('s_mul_i32 s82, %s, 1792' % S(sK1))]
        for t4 in range(4):
            out.append(mk('buffer_load_dwordx4 %s, %s, s82 offen offset:%d lds' % (V(vWa + t4), sW, 1024 * t4), tok=t))
        out += [mk(x) for x in K1_NEXT]
        return out

    def tr_setup(n, st):
        o = ['v_bfe_u32 v29, v0, 2, 2', 'v_lshrrev_b32 v30, 4, v0', 'v_lshl_add_u32 v31, v30, 3, v29', 'v_lshlrev_b32 v31, 8, v31',
             'v_and_b32 v30, 1, v30', 'v_lshl_or_b32 v29, v30, 2, v29', 'v_and_b32 v30, 3, v0', 'v_lshl_or_b32 v31, v30, 3, v31',
             's_and_b32 s97, %s, 3' % S(st)]
        for pp in range(n // 2):
            o += ['s_add_u32 s84, %s, %d' % (S(sWave), pp), ['s_cmp_ge_u32 s84, %d' % (n // 2), 's_cselect_b32 s85, %d, 0' % (n // 2)],
                  's_sub_u32 s84, s84, s85', 's_lshl_b32 s84, s84, 1', 's_add_u32 %s, s84, s97' % S(sFr + pp),
                  'v_xor_b32 v30, %s, v29' % S(sFr + pp), 'v_lshl_or_b32 %s, v30, 5, v31' % V(vTr + 2 * pp),
                  'v_xor_b32 %s, 32, %s' % (V(vTr + 2 * pp + 1), V(vTr + 2 * pp))]
        return o

    TCH[0] = 189

    g.extend(P.issue(0))
    g.extend(w_issue(0))
    rest = setup_rest() + tr_setup(n1, sSt1)
    rest += ['s_xor_b32 s97, %s, 1' % S(sCg)] + block_start('s97', S(sSt2))
    rest += ['s_and_b32 s84, %s, 0xfc' % S(sSt2), 's_lshl_b32 s84, s84, 5', 's_sub_u32 %s, %s, s84' % (S(sWd), S(sWd))]
    rest += ['v_lshrrev_b32 v29, 1, v0', 's_lshl_b32 s84, %s, 7' % S(sRbl), 's_lshl_b32 s85, %s, 5' % S(sWave), 's_add_u32 s84, s84, s85',
             'v_add_u32 v29, s84, v29', 'v_mul_u32_u24 v29, 3584, v29', 'v_and_b32 v30, 1, v0', 'v_lshl_add_u32 v29, v30, 7, v29',
             'v_subrev_u32 v191, %s, v29' % S(sWd)] + s_touch_addr(188)

    def w2_touch(t):
        return touch(191, sW, '0', 0xffffffff << (32 * t))

    m, left = spread([mk(x) for x in rest], P.issue(1) + w_issue(1), vgap=60, start=opt('st1', 100))
    g.extend(m + left)
    g.extend(tag_publish())
    if opt('pre2', 1):
        g.extend(P.issue(2) + w_issue(2))
        if opt('ta0', 1):
            g.extend(w2_touch(0))

    def uses_for(n, s0, acc, cs, first_pass):
        order = [(i, pos) for i in range(14) for pos in range(n)]
        order += [(14, 0), (14, 1), (15, 0), (15, 1)] + [(i, pos) for i in (14, 15) for pos in range(2, n)]
        us = []
        for i, pos in order:
            s, e = s0 + (i >> 1), i & 1
            off = (s & 3) * 16384 + e * 8192
            rds = ['ds_read_b64_tr_b16 %%s, %s offset:%d' % (V(vTr + pos), off + 1024 * h) for h in range(2)]
            ms = []
            for b in range(2):
                d = V(acc + 8 * pos + 4 * b, 4)
                c = d if i else '0'
                ms.append(mfma(d, xreg(i, b), '%B', c) if first_pass else mfma(d, '%B', xreg(i, b), c))
            if pos < 2:
                d = V(cs + 4 * pos, 4)
                c = d if i else '0'
                ms.append(mfma(d, V(vOnes, 4), '%B', c) if first_pass else mfma(d, '%B', V(vOnes, 4), c))
            if first_pass:
                ks = []
                if i < 14 and 2 <= pos < 6:
                    ks = [pos - 2]
                if i >= 14 and pos < 2:
                    ks = [2 * pos, 2 * pos + 1]
                for k in ks:
                    b = k & 1
                    if k < 2:
                        d = V(vSS + 4 * b, 4)
                        ms.append(mfma(d, xreg(i, b), xreg(i, b), d if i else '0'))
                    else:
                        d = V(vSM + 4 * b, 4)
                        ms.append(mfma(d, xreg(i, b), V(vOnes, 4), d if i else '0'))
            us.append((s, rds, ms))
        return us

    def open_items(s):
        it = [mkwait(wtok[s], *([P.dma[s]] if s < 8 else []))] + stamp_ins('o%d' % s) + [mk('s_barrier')]
        if s < 8:
            it += P.read(s)
        return it

    prog = [('i', n) for n in range(8, 13)]
    for n in range(13, 21):
        prog += [('r', n - 5), ('i', n)]
    late = [('r', 16), ('i', 21), ('r', 17), ('i', 22), ('r', 18), ('i', 23), ('r', 19)]

    def take(lst, k):
        out = []
        while lst and k > 0:
            a, n = lst.pop(0)
            out += P.read(n) if a == 'r' else P.issue(n)
            if a == 'i':
                k -= 1
        while lst and lst[0][0] == 'r' and len(lst) == 1:
            out += P.read(lst.pop(0)[1])
        return out

    bgs = {}
    us = uses_for(n1, 0, acc1, vCS, True)

    def open1(s):
        it = open_items(s)
        bg = []
        if s + 2 < 8 and not (s == 0 and opt('pre2', 1)):
            bg += P.issue(s + 2) + w_issue(s + 2)
        if s == opt('tb0', 5):
            bg += [mk(TAG_FETCH)] + ([] if opt('ta0', 1) else w2_touch(0)) + w2_touch(1)
            if not QHELP:
                bg += s_touch(188, 0) + s_touch(188, 1)
        if QHELP and s >= 6:
            bg += take(prog, opt('s67', 1))
        bgs[s] = bg
        return it

    pre, G, first, opened = build_pass(us, open1)
    gi = 0
    for s in range(8):
        gi = G.place(bgs[s], max(gi, opened[s] + 2), vspace=opt('vs1', 4), end=(opened[s + 1] + 6 if s < 7 else None))
    vCsv = acc2 + 24
    vSSd = acc2 + 16
    vS1 = acc2 + 32
    tcs = Tok('cs')
    gi = first[14 * n1 + 4]
    G.place(['v_and_b32 v29, 15, v0', 'v_lshlrev_b32 v29, 2, v29', 'v_add_u32 v29, %d, v29' % LZ_MISC, 's_lshl_b32 s84, %s, 6' % S(sFr),
             'v_add_u32 v30, s84, v29', 'v_lshrrev_b32 v31, 4, v0', 'v_mul_u32_u24 v31, 80, v31'], first[13 * n1])
    it = [mk('ds_write_b32 v30, %s' % V(vCS), tok=tcs), mk('ds_write_b32 v30, %s offset:64' % V(vCS + 4), tok=tcs)]
    gi = G.place(it, gi + 3, cap=12)
    it = [mkwait(tcs), mk('s_barrier')]
    for pp in range(n1 // 2):
        it += ['s_lshl_b32 s84, %s, 6' % S(sFr + pp), 'v_add_u32 v30, s84, v29', 'ds_read_b32 %s, v30' % V(vCsv + 2 * pp),
               'ds_read_b32 %s, v30 offset:64' % V(vCsv + 2 * pp + 1)]
    for b in range(2):
        for r in range(4):
            it.append('ds_bpermute_b32 %s, v31, %s offset:%d' % (V(vSSd + 4 * b + r), V(vSS + 4 * b + r), 4 * r))
    G.place(it, gi + 3, cap=12)
    g.extend(pre)
    G.emit(g)
    stamp(g, 'p1e')
    row_stats(g, vSM, vSSd, 8)
    tag_check(g)
    stamp(g, 'gel')
    main = []
    for pos in range(n1):
        pr = [acc1 + 8 * pos + 2 * k for k in range(4)]
        tm = [vB + 8 * (pos & 1) + 2 * k for k in range(4)]
        sel = 'op_sel_hi:[1,0]' if pos % 2 == 0 else 'op_sel:[0,1] op_sel_hi:[1,1]'
        cp = V(vCsv + (pos & ~1), 2)
        for k in range(4):
            main.append('v_pk_mul_f32 %s, %s, %s %s' % (V(tm[k], 2), V(vSM + 2 * k, 2), cp, sel))
        for k in range(4):
            main.append('v_pk_fma_f32 %s, %s, %s, %s neg_lo:[0,0,1] neg_hi:[0,0,1]' % (V(pr[k], 2), V(pr[k], 2), V(vSSd + 2 * k, 2), V(tm[k], 2)))
        main += gelu_pairs(pr, tm)
        for k in range(4):
            if pos == 0:
                main.append('v_pk_mul_f32 %s, %s, %s' % (V(vS1 + 8 + 2 * k, 2), V(pr[k], 2), V(pr[k], 2)))
            else:
                main.append('v_pk_fma_f32 %s, %s, %s, %s' % (V(vS1 + 8 + 2 * k, 2), V(pr[k], 2), V(pr[k], 2), V(vS1 + 8 + 2 * k, 2)))
            if pos == 1:
                main.append('v_pk_add_f32 %s, %s, %s' % (V(vS1 + 2 * k, 2), V(pr[k], 2), V(pr[k] - 8, 2)))
            elif pos > 1:
                main.append('v_pk_add_f32 %s, %s, %s' % (V(vS1 + 2 * k, 2), V(pr[k], 2), V(vS1 + 2 * k, 2)))
    bg = []
    if QHELP:
        bg = w_issue(8) + take(prog, opt('gg%d' % n1, 6 if n1 == 8 else 4)) + w_issue(9)
    m, left = spread([mk(x) for x in main], bg, vgap=opt('vgg', 70))
    g.extend(m)
    stamp(g, 'gle')
    vW_ = vB
    for k in range(2):
        for r in range(4):
            x0, x1, d = vS1 + 8 * k + r, vS1 + 8 * k + 4 + r, vW_ + 4 * k + r
            g.I('v_add_f32_dpp %s, %s, %s row_ror:8 row_mask:0xf bank_mask:0x3' % (V(d), V(x0), V(x0)))
    g.I('v_mov_b32 %s, %s' % (V(vTag), S(sTag)))
    for k in range(2):
        for r in range(4):
            x0, x1, d = vS1 + 8 * k + r, vS1 + 8 * k + 4 + r, vW_ + 4 * k + r
            g.I('v_add_f32_dpp %s, %s, %s row_ror:8 row_mask:0xf bank_mask:0xc' % (V(d), V(x1), V(x1)))
    vU = vB + 8
    vG = vB + 12
    adr = ['v_bfe_u32 v29, v0, 3, 1', 'v_lshlrev_b32 v29, 4, v29', 'v_bfe_u32 v30, v0, 4, 2', 'v_lshl_add_u32 v29, v30, 2, v29',
           'v_bfe_u32 v30, v0, 2, 1', 'v_lshl_add_u32 v29, v30, 1, v29', 'v_and_b32 v30, 1, v0', 'v_add_u32 v29, v29, v30',
           'v_lshlrev_b32 v29, 4, v29']
    for msk, ror, o in (('0x5', 12, 0), ('0xa', 4, 2)):
        for k in range(2):
            for r in range(2):
                x = vW_ + 4 * k + r + o
                g.I('v_add_f32_dpp %s, %s, %s row_ror:%d row_mask:0xf bank_mask:%s' % (V(vU + 2 * k + r), V(x), V(x), ror, msk))
        g.I(adr.pop(0))
        g.I(adr.pop(0))
    g.I('v_mov_b32 %s, %s' % (V(vG + 1), V(vTag)))
    for qp in ('[1,0,3,2]', '[2,3,0,1]'):
        for k in range(4):
            g.I('v_add_f32_dpp %s, %s, %s quad_perm:%s row_mask:0xf bank_mask:0xf' % (V(vU + k), V(vU + k), V(vU + k), qp))
        g.I(adr.pop(0))
        g.I(adr.pop(0))
    g.I(adr.pop(0))
    g.I('v_mov_b32 %s, %s' % (V(vG + 3), V(vTag)))
    g.I('v_cndmask_b32 %s, %s, %s, %s' % (V(vG), V(vU), V(vU + 1), S(sPar, 2)))
    g.I('v_cndmask_b32 %s, %s, %s, %s' % (V(vG + 2), V(vU + 2), V(vU + 3), S(sPar, 2)))
    g.I('s_lshl_b32 s84, %s, 14' % S(sRb))
    g.I('s_lshl_b32 s85, %s, 9' % S(sWave))
    g.I('s_add_u32 s0, s84, s85')
    g.I('s_add_u32 s0, s0, 0x%x' % WS_STA)
    g.I('s_lshl_b32 s85, %s, 11' % S(sCg))
    g.I('s_add_u32 s84, s85, s0')
    g.I('s_add_u32 s85, s84, 0x%x' % (WS_STB - WS_STA))
    if not MAPM:
        g.I('buffer_store_dwordx4 %s, v29, %s, s84 offen' % (V(vG, 4), sWS))
    g.I('buffer_store_dwordx4 %s, v29, %s, s85 offen sc1' % (V(vG, 4), sWS))
    stamp(g, 'pub')
    g.extend(left)
    if not QHELP:
        g.extend(w_issue(8) + w_issue(9))
    g.I('v_and_b32 v30, 15, v0')
    g.I('v_lshrrev_b32 v31, 2, v30')
    g.I('v_lshl_add_u32 v31, v31, 4, v30')
    g.I('v_lshlrev_b32 v31, 2, v31')
    for b in range(2):
        g.extend(to_lane_layout(vSSd + 4 * b, vRt + 2 * b, 31, vB, vB + 1))
        g.extend(to_lane_layout(vSM + 4 * b, vRt + 2 * b + 1, 31, vB + 2, vB + 3))
    for pp in range(n1 // 2):
        g.I('s_lshl_b32 s84, %s, 10' % S(sFr + pp))
        g.I('v_add_u32 %s, s84, %s' % (V(vZo + pp), V(vL16)))
    g.extend(tr_setup(n2, sSt2))
    vGa, vR2, vQ, vGad = 192, 208, 224, 188
    g.I('v_and_b32 v29, 31, v0')
    g.I('v_lshlrev_b32 v29, 4, v29')
    g.I('v_lshrrev_b32 v30, 5, v0')
    g.I('v_lshl_add_u32 %s, v30, 11, v29' % V(vGad))
    g.I('s_waitcnt lgkmcnt(0)')

    def gather(delta):
        o = []
        for i in range(4):
            o.append('s_add_u32 s85, s0, 0x%x' % (4096 * i + delta))
            o.append('buffer_load_dwordx4 %s, %s, %s, s85 offen sc1' % (V(vGa + 4 * i, 4), V(vGad), sWS))
        return o

    nb = Seg('norm')
    nb.extend(stamp_ins('chk'))
    G0 = WS_STB - WS_STA if MAPM else 0
    nb.extend(poll_items([gather(G0)] if MAPM else [gather(0), gather(WS_STB - WS_STA)], [vGa + 1 + 2 * i for i in range(8)], vR2))
    nb.extend(stamp_ins('got'))
    for k in range(2):
        nb.I('v_add_f32 %s, %s, %s' % (V(vGa + 2 * k), V(vGa + 2 * k), V(vGa + 4 + 2 * k)))
        nb.I('v_add_f32 %s, %s, %s' % (V(vGa + 8 + 2 * k), V(vGa + 8 + 2 * k), V(vGa + 12 + 2 * k)))
    for k in range(2):
        nb.I('v_add_f32 %s, %s, %s' % (V(vGa + 2 * k), V(vGa + 2 * k), V(vGa + 8 + 2 * k)))
    for k in range(2):
        nb.I('v_mov_b32 %s, %s' % (V(vGa + 2 * k + 1), V(vGa + 2 * k)))
    nb.I('s_lshl_b32 s85, %s, 8' % S(sWave))
    nb.I('s_add_u32 s85, s85, %d' % (LZ_MISC + 1024))
    for k in range(2):
        nb.I('v_permlane32_swap_b32 %s, %s' % (V(vGa + 2 * k), V(vGa + 2 * k + 1)))
    for k in range(2):
        nb.I('v_add_f32 %s, %s, %s' % (V(vGa + 2 * k), V(vGa + 2 * k), V(vGa + 2 * k + 1)))
    nb.I('v_mul_f32 %s, %s, %s' % (V(vGa), S(sLN2), V(vGa)))
    nb.I('v_mul_f32 %s, %s, %s' % (V(vGa + 2), S(sLN2), V(vGa + 2)))
    nb.I('v_and_b32 v29, 31, v0')
    nb.I('v_fma_f32 %s, -%s, %s, %s' % (V(vGa + 2), V(vGa), V(vGa), V(vGa + 2)))
    nb.I('v_lshl_add_u32 v29, v29, 2, s85')
    nb.I('v_max_f32 %s, 0, %s' % (V(vGa + 2), V(vGa + 2)))
    nb.I('v_lshrrev_b32 v30, 4, v0')
    nb.I('v_add_f32 %s, %s, %s' % (V(vGa + 2), S(sLN2 + 1), V(vGa + 2)))
    nb.I('v_lshl_add_u32 v30, v30, 4, s85')
    nb.I('v_rsq_f32 %s, %s' % (V(vGa + 2), V(vGa + 2)))
    tw = Tok('st2')
    nb.I('s_lshl_b32 s84, %s, 2' % S(sRb))
    nb.I('ds_write_b32 v29, %s' % V(vGa + 2), tok=tw)
    nb.I('v_mul_f32 %s, -%s, %s' % (V(vGa), V(vGa), V(vGa + 2)))
    nb.I('ds_write_b32 v29, %s offset:128' % V(vGa), tok=tw)
    for b in range(2):
        nb.I('ds_read_b128 %s, v30 offset:%d' % (V(vR2 + 4 * b, 4), 64 * b))
        nb.I('ds_read_b128 %s, v30 offset:%d' % (V(vR2 + 8 + 4 * b, 4), 128 + 64 * b))
    nb.I('s_add_u32 s84, s84, %s' % S(sWave))
    nb.I('s_mul_i32 s84, s84, 56')
    nb.I('s_and_b32 s85, %s, 0xfc' % S(sSt1))
    nb.I('s_add_u32 s84, s84, s85')
    nb.I('s_lshl_b32 s84, s84, 10')
    nb.I('s_add_u32 s84, s84, 0x%x' % WS_Z2N)
    tz = Tok('z2n')
    for pp in range(n1 // 2):
        for o in range(2):
            a = acc1 + 8 * (2 * pp + o)
            for k in range(4):
                nb.I('v_pk_fma_f32 %s, %s, %s, %s' % (V(a + 2 * k, 2), V(a + 2 * k, 2), V(vR2 + 2 * k, 2), V(vR2 + 8 + 2 * k, 2)))
        qs = [vQ + 8 * (pp & 1) + 4 * o for o in range(2)]
        for o in range(2):
            a = acc1 + 8 * (2 * pp + o)
            for k in range(4):
                nb.I('v_cvt_pk_bf16_f32 %s, %s, %s' % (V(qs[o] + k), V(a + 2 * k), V(a + 2 * k + 1)))
        for sw in ('v_permlane32_swap_b32', 'v_permlane16_swap_b32'):
            for q in qs:
                nb.I('%s %s, %s' % (sw, V(q), V(q + 2)))
                nb.I('%s %s, %s' % (sw, V(q + 1), V(q + 3)))
        for o in range(2):
            nb.I('buffer_store_dwordx4 %s, %s, %s, s84 offen offset:%d %s' % (V(qs[o], 4), V(vZo + pp), sWS, 1024 * o, opt('z2f', 'sc1').replace('+', ' ')), tok=tz)
    nb.extend(stamp_ins('nrm'))

    SG = opt('sg%d' % n1, 8 if n1 == 8 else 9)
    SN = opt('sn%d' % n1, 10 if n1 == 8 else 11)
    SF = opt('sf%d' % n1, SN + 2)
    bgs = {}

    def open2(s):
        it = open_items(s)
        bg = []
        if s == SG:
            bg += [mk(x) for x in gather(G0)]
        if s + 2 < 16:
            bg += w_issue(s + 2)
        if s == SF:
            bg = flag_items([tz], WS_ZF, sRb, sCg) + stamp_ins('zfl') + bg
        k = opt('sp', 1)
        bg += take(prog, k) if prog else (take(late, k) if s >= SN else [])
        bgs[s] = bg
        return it

    us = uses_for(n2, 8, acc2, vCS2, False)
    pre, G, first, opened = build_pass(us, open2)
    ni = first[(SN - 8) * 2 * n2]
    G.pre.setdefault(ni, [])
    G.pre[ni] = nb.ins + G.pre[ni]
    gi = 0
    for s in range(8, 16):
        st = opened[s] + 2
        if s == SN:
            st = ni
        en = opened[s + 1] + 4 if s < 15 else None
        if s == SN - 1:
            en = ni - 1
        gi = G.place(bgs[s], max(gi, st), vspace=opt('vs2', 3), cap=opt('cap2', 12), end=en)
    tcs = Tok('cs2')
    G.place(['v_lshrrev_b32 v29, 4, v0', 'v_lshlrev_b32 v29, 4, v29', 'v_add_u32 v29, %d, v29' % (LZ_MISC + 512),
             's_lshl_b32 s84, %s, 6' % S(sFr), 'v_add_u32 v30, s84, v29'], first[13 * n2], cap=12)
    gi = G.place([mk('ds_write_b128 v30, %s' % V(vCS2, 4), tok=tcs), mk('ds_write_b128 v30, %s offset:64' % V(vCS2 + 4, 4), tok=tcs)],
                 first[14 * n2 + 4] + 3, cap=12)
    vC2 = acc1
    it = [mkwait(tcs), mk('s_barrier')]
    for pp in range(n2 // 2):
        it += ['s_lshl_b32 s84, %s, 6' % S(sFr + pp), 'v_add_u32 v30, s84, v29', 'ds_read_b128 %s, v30' % V(vC2 + 8 * pp, 4),
               'ds_read_b128 %s, v30 offset:64' % V(vC2 + 8 * pp + 4, 4)]
    G.place(it, gi + 3, cap=12)
    g.extend(pre)
    G.emit(g)
    stamp(g, 'p2z')
    rem = take(prog, 99) + take(late, 99)
    g.I('s_lshl_b32 s85, %s, 3' % S(sRb))
    g.I('s_lshl_b32 s84, %s, 1' % S(sWave))
    g.I('s_add_u32 s85, s85, s84')
    g.I('s_mul_i32 s85, s85, %d' % (28 * 1024))
    g.I('s_and_b32 s84, %s, 0xfc' % S(sSt2))
    g.I('s_lshl_b32 s84, s84, 9')
    g.I('s_add_u32 s85, s85, s84')
    g.I('s_add_u32 s85, s85, 0x%x' % WS_Z1R)
    zm = []
    tz1 = Tok('z1r')
    tq = vB
    for pp in range(n2 // 2):
        zm.append('s_lshl_b32 s96, %s, 9' % S(sFr + pp))
        zm.append('s_add_u32 s96, s96, s85')
        zm.append('s_add_u32 s97, s96, %d' % (28 * 1024))
        for b in range(2):
            q = tq + 16 + 4 * ((2 * pp + b) & 3)
            rt = V(vRt + 2 * b, 2)
            for o in range(2):
                pos = 2 * pp + o
                for k in range(2):
                    zm.append('v_pk_mul_f32 %s, %s, %s op_sel:[0,1] op_sel_hi:[1,1]' % (V(tq + 4 * o + 2 * k, 2), V(vC2 + 4 * pos + 2 * k, 2), rt))
            for o in range(2):
                a = acc2 + 8 * (2 * pp + o) + 4 * b
                for k in range(2):
                    zm.append('v_pk_fma_f32 %s, %s, %s, %s op_sel_hi:[1,0,1] neg_lo:[0,0,1] neg_hi:[0,0,1]' % (V(a + 2 * k, 2), V(a + 2 * k, 2), rt, V(tq + 4 * o + 2 * k, 2)))
            for o in range(2):
                a = acc2 + 8 * (2 * pp + o) + 4 * b
                for k in range(2):
                    zm.append('v_cvt_pk_bf16_f32 %s, %s, %s' % (V(q + 2 * o + k), V(a + 2 * k), V(a + 2 * k + 1)))
            zm.append(mk('buffer_store_dwordx4 %s, %s, %s, %s offen%s' % (V(q, 4), V(vL16), sWS, S(96 + b), '' if opt('z1p', 0) else ' sc1'), tok=tz1))
    if opt('zlast', 0):
        g.extend(rem)
        stamp(g, 'rem')
        for n in range(20, 24):
            g.wait(P.dma[n])
        stamp(g, 'rem2')
        rem = []
    m, left = spread([mk(x) for x in zm], rem, vgap=60)
    g.extend(m + left)
    for n in range(20, 24):
        g.extend(P.read(n))
    g.extend(zflag_addr() + [ZF_LOAD])
    g.I('s_xor_b32 s83, %s, 1' % S(sCg))
    g.I('s_lshl_b32 s82, %s, 3' % S(sRb))
    g.I('s_add_u32 s82, s82, s83')
    g.I('s_lshl_b32 s82, s82, 7')
    g.I('s_add_u32 s0, s82, 0x%x' % WS_Z1F)
    g.extend(poll_items([[ZF_LOAD]], [12, 13, 14, 15], 29))
    g.I('s_waitcnt lgkmcnt(0)')
    g.I('s_branch L_p2')
    return g


def p1q():
    g = Seg('p1q')
    P = Priv(LQ_NSLOT)
    acc, hal, vSM, vSS, vHS = 64, 160, 172, 180, 188
    vRdH = vTr + 4
    wtok = {}

    def accr(u, hp, b):
        return acc + 32 * u + 8 * hp + 4 * b

    def w_issue(s):
        t = wtok[s] = Tok('W%d' % s)
        out = [mk('s_mul_i32 s82, %s, 1536' % S(sWd))]
        for e in range(2):
            out.append(mk('s_add_u32 m0, %s, %d' % (S(sWm), (s % 3) * 24576 + e * 12288)))
            if e:
                out.append(mk('s_add_u32 s82, s82, %d' % (32 * 3072)))
            for u in range(3):
                out.append(mk('buffer_load_dwordx4 %s, %s, s82 offen offset:%d lds' % (V(vWa), sW, 1024 * u), tok=t))
        out += [mk('s_add_u32 %s, %s, 128' % (S(sWd), S(sWd))), mk('s_and_b32 %s, %s, 0x380' % (S(sWd), S(sWd)))]
        return out

    def x_issue(s):
        return P.issue(s) + [mk(x) for x in K1_NEXT]

    g.I('s_lshl_b32 %s, %s, 14' % (S(sPriv), S(sWave)))
    g.I('s_add_u32 %s, %s, %d' % (S(sPriv), S(sPriv), LQ_PRIV))
    g.I('s_mul_i32 %s, %s, 3072' % (S(sWm), S(sWave)))
    g.I('v_lshrrev_b32 v31, 3, v0')
    g.I('v_bfe_u32 v29, v0, 4, 1')
    g.I('s_and_b32 s82, %s, 1' % S(sWave))
    g.I('s_lshl_b32 s82, s82, 1')
    g.I('v_or_b32 v29, s82, v29')
    g.I('v_bfe_u32 v30, v0, 1, 2')
    g.I('v_xor_b32 v29, v29, v30')
    g.I('v_lshlrev_b32 v29, 5, v29')
    g.I('v_and_b32 v30, 1, v0')
    g.I('v_lshl_or_b32 v29, v30, 4, v29')
    g.I('s_lshl_b32 s82, %s, 3' % S(sWave))
    g.I('v_add_u32 v30, s82, v31')
    g.I('v_mul_u32_u24 v30, 3072, v30')
    g.I('s_lshl_b32 s82, %s, 7' % S(sCg))
    g.I('v_add3_u32 %s, v30, v29, s82' % V(vWa))
    hreg = [13, 14, 15, 22]
    g.I('s_lshl_b32 s84, %s, 17' % S(sRb))
    g.I('s_sub_u32 s84, s84, 16384')
    for t2 in range(2):
        g.I('s_lshl_b32 s82, %s, 8' % S(sWave))
        g.I('s_add_u32 s82, s82, %s' % S(sK1))
        if t2:
            g.I('s_add_u32 s82, s82, 128')
        g.I('s_and_b32 s82, s82, 0x380')
        g.I('s_add_u32 s82, s82, s84')
        if t2:
            g.I('s_sub_u32 s82, s82, 2048')
        for q in range(2):
            g.I('v_add_u32 %s, s82, %s' % (V(hreg[2 * t2 + q]), V(vXa + q)))
    vTw, vTs = 245, 246
    srd_first(g, 50, 51, 0x180000, None)
    g.I('s_mov_b32 %s, %s' % (S(sWd), S(sK1)))
    TCH[0] = 23
    g.extend(x_issue(0))
    g.extend(w_issue(0))
    th = Tok('halo')
    g.I('s_mov_b32 s8, s48\ns_mov_b32 s9, s49\ns_mov_b32 s10, 0x200000\ns_mov_b32 s11, 0x20000')
    g.I('s_lshl_b32 s83, %s, 12' % S(sWave))
    g.I('s_add_u32 m0, s83, %d' % LQ_HALO)
    for t in range(4):
        g.I('buffer_load_dwordx4 %s, %s, 0 offen offset:%d lds' % (V(hreg[t]), sX, 1024 * t), tok=th)
    rest = setup_rest(True) + s_touch_addr(vTs)
    if QHELP:
        rest += ['v_xor_b32 %s, %d, %s' % (V(vTw), 0 if ROT2 else 512, V(vTs)), 'v_add_u32 %s, 0x100000, %s' % (V(vTs), V(vTs))]
    rest += ['v_lshrrev_b32 v30, 4, v0', 'v_mul_u32_u24 v31, 3072, v30', 'v_bfe_u32 v29, v0, 2, 2', 'v_lshl_add_u32 v31, v29, 7, v31',
             'v_and_b32 v29, 3, v0', 'v_lshl_add_u32 v31, v29, 3, v31', 'v_bfe_u32 v29, v0, 3, 2', 'v_xor_b32 v29, %s, v29' % S(sWave),
             'v_lshl_add_u32 %s, v29, 5, v31' % V(vTr)]
    for hp in range(1, 4):
        rest.append('v_xor_b32 %s, %d, %s' % (V(vTr + hp), hp << 5, V(vTr)))
    rest += ['s_sub_u32 s84, %d, %s' % (LQ_HALO, S(sPriv)), 'v_add_u32 %s, s84, %s' % (V(vRdH), V(vRd0)),
             'v_add_u32 %s, s84, %s' % (V(vRdH + 1), V(vRd1))]
    rest += ['v_lshrrev_b32 v29, 3, v0', 'v_lshlrev_b32 v29, 11, v29', 'v_and_b32 v30, 7, v0', 'v_lshl_add_u32 v29, v30, 4, v29',
             's_lshl_b32 s84, %s, 12' % S(sWave), 's_add_u32 s84, s84, %d' % LQ_HALO, 'v_add_u32 v31, s84, v29']
    m, left = spread([mk(x) for x in rest], x_issue(1) + w_issue(1), vgap=60, start=opt('st1', 100))
    g.extend(m + left)
    g.extend(tag_publish())
    tone = Tok('ones')
    g.wait(th)
    g.I('s_mov_b64 exec, 0xffff')
    g.I('ds_write_b128 v31, %s' % V(vOnes, 4), tok=tone)
    g.I('s_mov_b64 exec, -1')

    hq = [V(192, 4), V(196, 4)]
    order = [(i, hp, u) for i in range(14) for hp in range(4) for u in range(3)]
    order += [(i, 0, u) for i in (14, 15) for u in range(3)] + [(i, hp, u) for i in (14, 15) for hp in range(1, 4) for u in range(3)]
    us = []
    hread = []
    for i, hp, u in order:
        s, e = i >> 1, i & 1
        k = 3 * hp + u
        off = (s % 3) * 24576 + e * 12288 + u * 1024
        rds = ['ds_read_b64_tr_b16 %%s, %s offset:%d' % (V(vTr + hp), off + 512 * h) for h in range(2)]
        ms = []
        for b in range(2):
            d = V(accr(u, hp, b), 4)
            c = d if i else '0'
            ms.append(mfma(d, '%B', xreg(i, b), c) if u < 2 else mfma(d, xreg(i, b), '%B', c))
        if hp == 0:
            d = V(hal + 4 * u, 4)
            c = d if i else '0'
            ms.append(mfma(d, '%B', hq[e], c) if u < 2 else mfma(d, hq[e], '%B', c))
        ks = []
        if i < 14 and 3 <= k < 8:
            ks = [k - 3]
        if i >= 14 and hp == 0:
            ks = [(0, 1), (2, 3), (4,)][u]
        for kk in ks:
            if kk < 2:
                d = V(vSS + 4 * kk, 4)
                ms.append(mfma(d, xreg(i, kk), xreg(i, kk), d if i else '0'))
            elif kk < 4:
                d = V(vSM + 4 * (kk - 2), 4)
                ms.append(mfma(d, xreg(i, kk - 2), V(vOnes, 4), d if i else '0'))
            else:
                d = V(vHS, 4)
                ms.append(mfma(d, hq[e], hq[e], d if i else '0'))
        if i < 14 and k == 8:
            hread.append((len(us), 'ds_read_b128 %s, %s offset:%d' % (hq[e], V(vRdH + e), 2048 * ((i + 2) >> 1))))
        us.append((s, rds, ms))
    bgs = {}
    SQ0 = opt('sq0', 7 if QHELP else 4)

    def openq(s):
        it = [mkwait(wtok[s], P.dma[s], *([tone] if s == 0 else []))] + stamp_ins('o%d' % s) + [mk('s_barrier')]
        it += P.read(s)
        if s == 0:
            it += [mk('ds_read_b128 %s, %s' % (hq[e], V(vRdH + e))) for e in range(2)]
        bg = []
        if s == 0:
            bg += w_issue(2)
        if s >= 2 and s + 1 < 8:
            bg += w_issue(s + 1)
        if s > SQ0:
            bg += P.read(8 + s - SQ0 - 1)
        if s + 2 < 8:
            bg += x_issue(s + 2)
        if s >= SQ0:
            bg += P.issue(8 + s - SQ0)
        if QHELP:
            for st, v, t in ((opt('tq0', 0), vTw, 0), (opt('tq1', 2), vTw, 1), (opt('tq2', 4), vTs, 0), (opt('tq3', 6), vTs, 1)):
                if s == st:
                    bg += s_touch(v, t)
            if s == 6:
                bg.insert(len(bg) - 1, mk(TAG_FETCH))
        else:
            if s == opt('tq0', 0):
                bg += s_touch(vTs, 0)
            if s == 6:
                bg += [mk(TAG_FETCH)] + s_touch(vTs, 1)
        bgs[s] = bg
        return it

    pre, G, first, opened = build_pass(us, openq)
    for u, t in hread:
        G.place([t], first[u] + 1)
    gi = 0
    for s in range(8):
        gi = G.place(bgs[s], max(gi, opened[s] + 2), vspace=opt('vsq', 4), end=(opened[s + 1] - 1 if s < 7 else None))
    nS = 8 + 8 - SQ0
    CS = LQ_MISC
    vR, vRM = 200, 212
    vCv = 224
    vCq = 228
    G.place(['v_lshrrev_b32 v30, 4, v0', 's_lshl_b32 s84, %s, 6' % S(sWave), 's_add_u32 s84, s84, %d' % CS, 'v_lshl_add_u32 v13, v30, 4, s84',
             'v_and_b32 v29, 15, v0', 'v_lshl_add_u32 v14, v29, 2, s84', 'v_mul_u32_u24 v31, 80, v30', 'v_lshlrev_b32 v30, 6, v30'], first[13 * 12])
    tcs = Tok('cs')
    it = [[mk('s_mov_b32 exec_lo, 0x00010001'), mk('s_mov_b32 exec_hi, 0x00010001'), mk('ds_write_b128 v13, %s' % V(hal, 4), tok=tcs),
           mk('ds_write_b128 v13, %s offset:256' % V(hal + 4, 4), tok=tcs), mk('s_mov_b64 exec, 0xffff'),
           mk('ds_write_b32 v14, %s offset:512' % V(hal + 8), tok=tcs), mk('s_mov_b64 exec, -1')]]
    gi = first[14 * 12 + 6] + 3
    G.put(gi, it[0])
    it = []
    for b in range(2):
        for r in range(4):
            it.append('ds_bpermute_b32 %s, v31, %s offset:%d' % (V(vR + 4 * b + r), V(vSS + 4 * b + r), 4 * r))
    for r in range(4):
        it.append('ds_bpermute_b32 %s, v31, %s offset:%d' % (V(vR + 8 + r), V(vHS + r), 4 * r))
    for r in range(4):
        it.append('ds_bpermute_b32 %s, v30, %s' % (V(vRM + 8 + r), V(vHS + r)))
    for i in range(8):
        it.append('v_mov_b32 %s, %s' % (V(vRM + i), V(vSM + i)))
    it += [mkwait(tcs), mk('s_barrier')]
    for hp in range(4):
        if hp:
            it += ['v_xor_b32 v29, %d, v13' % (hp << 6), 'v_xor_b32 v15, %d, v14' % (hp << 6)]
        it.append('ds_read_b128 %s, %s offset:256' % (V(vCq + 4 * hp, 4), 'v29' if hp else 'v13'))
        it.append('ds_read_b32 %s, %s offset:512' % (V(vCv + hp), 'v15' if hp else 'v14'))
    G.place(it, gi + 1, cap=12)
    g.extend(pre)
    G.emit(g)
    stamp(g, 'p1e')
    if QHELP and W3AT == 'p1e':
        g.extend(w3_touches(15))
    vCq0 = vB
    for hp in range(4):
        if hp:
            g.I('v_xor_b32 v29, %d, v13' % (hp << 6))
        g.I('ds_read_b128 %s, %s' % (V(vCq0 + 4 * hp, 4), 'v29' if hp else 'v13'))
    row_stats(g, vRM, vR, 12)
    vRt = 176
    g.I('v_and_b32 v30, 15, v0')
    g.I('v_lshrrev_b32 v31, 2, v30')
    g.I('v_lshl_add_u32 v31, v31, 4, v30')
    g.I('v_lshlrev_b32 v31, 2, v31')
    for b in range(3):
        g.extend(to_lane_layout(vR + 4 * b, vRt + 2 * b, 31, 182, 183))
        g.extend(to_lane_layout(vRM + 4 * b, vRt + 2 * b + 1, 31, 184, 185))
    tag_check(g)
    g.I('v_mov_b32 %s, %s' % (V(vTag), S(sTag)))
    tm = 48
    main = []

    def fold_dp(a, cs4, b):
        rt = V(vRt + 2 * b, 2)
        for k in range(2):
            main.append('v_pk_mul_f32 %s, %s, %s op_sel:[0,1] op_sel_hi:[1,1]' % (V(tm + 2 * k, 2), V(cs4 + 2 * k, 2), rt))
        for k in range(2):
            main.append('v_pk_fma_f32 %s, %s, %s, %s op_sel_hi:[1,0,1] neg_lo:[0,0,1] neg_hi:[0,0,1]' % (V(a + 2 * k, 2), V(a + 2 * k, 2), rt, V(tm + 2 * k, 2)))

    def fold_d(a, hp, b):
        sel = 'op_sel_hi:[1,0]' if hp % 2 == 0 else 'op_sel:[0,1] op_sel_hi:[1,1]'
        for k in range(2):
            main.append('v_pk_mul_f32 %s, %s, %s %s' % (V(tm + 4 + 2 * k, 2), V(vRM + 4 * b + 2 * k, 2), V(vCv + (hp & ~1), 2), sel))
        for k in range(2):
            main.append('v_pk_fma_f32 %s, %s, %s, %s neg_lo:[0,0,1] neg_hi:[0,0,1]' % (V(a + 2 * k, 2), V(a + 2 * k, 2), V(vR + 4 * b + 2 * k, 2), V(tm + 4 + 2 * k, 2)))

    def pack(dst, a):
        for k in range(2):
            main.append('v_cvt_pk_bf16_f32 %s, %s, %s' % (V(dst + k), V(a + 2 * k), V(a + 2 * k + 1)))

    seq = list(range(nS, 16)) + [20, 21, 22, 23, 16, 17, 18, 19]
    prog = [('r', nS - 1)]
    for k, n in enumerate(seq):
        if k >= 3:
            prog.append(('r', seq[k - 3]))
        prog.append(('i', n))
    prog += [('r', n) for n in seq[-3:]]
    VP = 16

    def take(k, allow_v):
        out = []
        while prog and k > 0:
            a, n = prog[0]
            if a == 'r' and VP <= n < 20 and not allow_v:
                break
            prog.pop(0)
            out += P.read(n) if a == 'r' else P.issue(n)
            if a == 'i':
                k -= 1
        return out

    for hp in range(4):
        for b in range(2):
            fold_d(accr(2, hp, b), hp, b)
    fold_d(hal + 8, 0, 2)
    fold_dp(hal + 4, vCq, 2)
    pack(hal + 4, hal + 4)
    pack(hal + 8, hal + 8)
    for hp in range(4):
        for b in range(2):
            fold_dp(accr(1, hp, b), vCq + 4 * hp, b)
        for u in (1, 2):
            a = accr(u, hp, 0)
            main.append('v_cvt_pk_bf16_f32 %s, %s, %s' % (V(a + 3), V(a + 2), V(a + 3)))
            main.append('v_cvt_pk_bf16_f32 %s, %s, %s' % (V(a + 2), V(a), V(a + 1)))
            pack(a + 4, a + 4)
    m, left = spread([mk(x) for x in main], take(2, False), vgap=75)
    g.extend(m + left)
    main = []
    g.I('s_barrier')
    g.I('s_lshl_b32 s84, %s, 12' % S(sWave))
    g.I('s_lshl_b32 s85, %s, 10' % S(sWave))
    g.I('s_add_u32 s84, s84, s85')
    g.I('v_lshlrev_b32 v29, 3, v0')
    g.I('v_add_u32 v13, s84, v29')
    g.I('v_add_u32 v14, s85, v29')
    tx = Tok('xch')
    g.I('ds_write_b64 v14, %s' % V(hal + 4, 2), tok=tx)
    g.I('ds_write_b64 v14, %s offset:512' % V(hal + 8, 2), tok=tx)
    for hp in range(4):
        if hp:
            g.I('v_xor_b32 %s, %d, v13' % (V(vTr + hp), hp << 10))
        ad = V(vTr + hp) if hp else 'v13'
        g.I('ds_write_b64 %s, %s offset:4096' % (ad, V(accr(1, hp, 0) + 4, 2)), tok=tx)
        g.I('ds_write_b64 %s, %s offset:4608' % (ad, V(accr(2, hp, 0) + 4, 2)), tok=tx)
    for hp in range(4):
        for b in range(2):
            fold_dp(accr(0, hp, b), vCq0 + 4 * hp, b)
        a = accr(0, hp, 0)
        pack(a, a)
        pack(a + 2, a + 4)
    vMb = 192
    main += ['v_and_b32 v29, 14, v0', 'v_bfe_u32 v30, v0, 4, 2', 'v_lshlrev_b32 v30, 2, v30', 'v_sub_u32 v29, v29, v30',
             'v_mov_b32 v30, 0x%x' % f2u(-1e30)]
    for k, (cmp_, c) in enumerate((('ge', -2), ('ge', 0), ('le', 0), ('le', 2))):
        main += ['v_cmp_%s_i32 vcc, %d, v29' % (cmp_, c), 'v_cndmask_b32 %s, v30, 0, vcc' % V(vMb + k)]
    main += ['s_lshl_b32 s84, %s, 2' % S(sRb), 's_or_b32 s84, s84, %s' % S(sWave)]
    m, left = spread([mk(x) for x in main], take(1, False), vgap=75)
    g.extend(m + left)
    g.I('s_cmp_eq_u32 s84, 0')
    g.I('s_cselect_b64 vcc, -1, 0')
    g.I('v_cndmask_b32 %s, %s, v30, vcc' % (V(vMb + 4), V(vMb)))
    g.I('v_cndmask_b32 %s, %s, v30, vcc' % (V(vMb + 5), V(vMb + 1)))
    g.I('v_cndmask_b32 %s, 1.0, 0, %s' % (V(vMb + 6), S(sPar, 2)))
    g.I('v_cndmask_b32 %s, 0, 1.0, %s' % (V(vMb + 7), S(sPar, 2)))
    g.I('s_mov_b32 s84, 0x%x' % f2u(0.25 * math.log2(math.e)))
    g.I('s_mov_b32 s85, s84')
    g.wait(tx)
    g.I('s_barrier')
    stamp(g, 'att')
    if QHELP and W3AT == 'att':
        g.extend(w3_touches(15))
        g.I('s_mov_b32 s84, 0x%x' % f2u(0.25 * math.log2(math.e)))
        g.I('s_mov_b32 s85, s84')
    for hp in range(4):
        ad = V(vTr + hp) if hp else 'v13'
        g.I('ds_read_b64 %s, %s' % (V(accr(1, hp, 0), 2), ad))
        g.I('ds_read_b64 %s, %s offset:512' % (V(accr(2, hp, 0), 2), ad))
    to = Tok('o')
    vO = 160
    for b in (1, 0):
        T = [vB + 8 * hp for hp in range(4)]
        U = [200 + 6 * hp for hp in range(4)]
        st = [[] for _ in range(20)]
        for hp in range(4):
            t, u_ = T[hp], U[hp]
            kq, q = accr(1, hp, 0), accr(0, hp, 0) + 2 * b
            st[0].append('v_mfma_f32_16x16x16_bf16 %s, %s, %s, 0' % (V(t, 4), V(kq + 2 * b, 2), V(q, 2)))
            st[0].append('v_mfma_f32_16x16x16_bf16 %s, %s, %s, 0' % (V(t + 4, 4), V(kq + 2 * b + 2, 2), V(q, 2)))
            for k in range(4):
                st[1].append('v_cndmask_b32 %s, %s, %s, %s' % (V(u_ + k), V(t + 2 * k), V(t + 2 * k + 1), S(sPar, 2)))
            m01 = V(vMb + 4, 2) if b == 0 else V(vMb, 2)
            st[2].append('v_pk_fma_f32 %s, %s, s[84:85], %s' % (V(u_, 2), V(u_, 2), m01))
            st[2].append('v_pk_fma_f32 %s, %s, s[84:85], %s' % (V(u_ + 2, 2), V(u_ + 2, 2), V(vMb + 2, 2)))
            st[3].append('v_max3_f32 %s, %s, %s, %s' % (V(u_ + 4), V(u_), V(u_ + 1), V(u_ + 2)))
            st[4].append('v_max_f32 %s, %s, %s' % (V(u_ + 4), V(u_ + 4), V(u_ + 3)))
            st[5].append('v_mov_b32 %s, %s' % (V(u_ + 5), V(u_ + 4)))
            st[6].append('v_permlane32_swap_b32 %s, %s' % (V(u_ + 4), V(u_ + 5)))
            st[7].append('v_max_f32 %s, %s, %s' % (V(u_ + 4), V(u_ + 4), V(u_ + 5)))
            st[7].append('v_mov_b32 %s, %s' % (V(u_ + 5), V(u_ + 4)))
            st[8].append('v_permlane16_swap_b32 %s, %s' % (V(u_ + 4), V(u_ + 5)))
            st[9].append('v_max_f32 %s, %s, %s' % (V(u_ + 4), V(u_ + 4), V(u_ + 5)))
            for k in range(2):
                st[10].append('v_pk_add_f32 %s, %s, %s op_sel_hi:[1,0] neg_lo:[0,1] neg_hi:[0,1]' % (V(u_ + 2 * k, 2), V(u_ + 2 * k, 2), V(u_ + 4, 2)))
            for k in range(4):
                st[11].append('v_exp_f32 %s, %s' % (V(u_ + k), V(u_ + k)))
            st[12].append('v_pk_add_f32 %s, %s, %s' % (V(u_ + 4, 2), V(u_, 2), V(u_ + 2, 2)))
            st[13].append('v_add_f32 %s, %s, %s' % (V(u_ + 4), V(u_ + 4), V(u_ + 5)))
            st[13].append('v_mov_b32 %s, %s' % (V(u_ + 5), V(u_ + 4)))
            st[14].append('v_permlane32_swap_b32 %s, %s' % (V(u_ + 4), V(u_ + 5)))
            st[15].append('v_add_f32 %s, %s, %s' % (V(u_ + 4), V(u_ + 4), V(u_ + 5)))
            st[15].append('v_mov_b32 %s, %s' % (V(u_ + 5), V(u_ + 4)))
            st[16].append('v_permlane16_swap_b32 %s, %s' % (V(u_ + 4), V(u_ + 5)))
            st[17].append('v_add_f32 %s, %s, %s' % (V(u_ + 4), V(u_ + 4), V(u_ + 5)))
            st[18].append('v_rcp_f32 %s, %s' % (V(u_ + 4), V(u_ + 4)))
            st[19].append('v_pk_mul_f32 %s, %s, %s op_sel_hi:[1,0]' % (V(u_ + 4, 2), V(vMb + 6, 2), V(u_ + 4, 2)))
        main = [x for s_ in st for x in s_]
        for hp in range(4):
            t, u_ = T[hp], U[hp]
            for k in range(4):
                sel = 'op_sel_hi:[1,0]' if k % 2 == 0 else 'op_sel:[0,1] op_sel_hi:[1,1]'
                main.append('v_pk_mul_f32 %s, %s, %s %s' % (V(t + 2 * k, 2), V(u_ + 4, 2), V(u_ + (k & ~1), 2), sel))
        for hp in range(4):
            t, u_ = T[hp], U[hp]
            for k in range(4):
                main.append('v_cvt_pk_bf16_f32 %s, %s, %s' % (V(u_ + k), V(t + 2 * k), V(t + 2 * k + 1)))
        for hp in range(4):
            main.append(mfma(V(T[hp], 4), V(accr(2, hp, 0) + 2 * b, 4), V(U[hp], 4), '0'))
        m, left = spread([mk(x) for x in main], take(3, False), vgap=75)
        g.extend(m + left)
        for hp in range(4):
            for k in range(2):
                g.I('v_cvt_pk_bf16_f32 %s, %s, %s' % (V(vO + 8 * b + 2 * hp + k), V(T[hp] + 2 * k), V(T[hp] + 2 * k + 1)))
    lsk = lab('L_osw')
    g.I('s_bitcmp1_b32 %s, 0' % S(sWave))
    g.I('s_cbranch_scc0 %s' % lsk)
    for b in range(2):
        for pr in range(2):
            for k in range(2):
                g.I('v_swap_b32 %s, %s' % (V(vO + 8 * b + 4 * pr + k), V(vO + 8 * b + 4 * pr + 2 + k)))
    g.label(lsk)
    g.I('s_lshl_b32 s82, %s, 3' % S(sRb))
    g.I('s_lshl_b32 s83, %s, 1' % S(sWave))
    g.I('s_add_u32 s82, s82, s83')
    g.I('s_lshl_b32 s82, s82, 4')
    g.I('s_lshl_b32 s83, %s, 1' % S(sCg))
    g.I('s_add_u32 s82, s82, s83')
    g.I('s_lshr_b32 s83, %s, 1' % S(sWave))
    g.I('s_add_u32 s82, s82, s83')
    g.I('s_lshl_b32 s82, s82, 10')
    g.I('s_add_u32 s82, s82, 0x%x' % WS_O)
    g.I('s_xor_b32 s83, s82, 1024')
    g.I('s_add_u32 s84, s82, 16384')
    g.I('s_add_u32 s85, s83, 16384')
    for b in range(2):
        for pr in range(2):
            g.I('buffer_store_dwordx4 %s, %s, %s, %s offen sc1' % (V(vO + 8 * b + 4 * pr, 4), V(vL16), sWS, S(82 + 2 * b + pr)), tok=to)
    stamp(g, 'ost')
    g.extend(take(99, True))
    assert not prog
    if QHELP and W3AT == 'end':
        g.extend(w3_touches(15))
    g.I('s_lshl_b32 s82, %s, 3' % S(sRb))
    g.I('s_add_u32 s82, s82, %s' % S(sCg))
    g.I('s_lshl_b32 s82, s82, 7')
    g.I('s_add_u32 s0, s82, 0x%x' % WS_OF)
    g.extend(zflag_addr() + [ZF_LOAD])
    g.extend(poll_items([[ZF_LOAD]], [12, 13, 14, 15], 29))
    g.I('s_waitcnt lgkmcnt(0)')
    return g


def p23():
    g = Seg('p23')
    g.label('L_p2')
    g.I('s_nop 7')
    stamp(g, 'p2')
    acc = 64
    vL16b = 4
    LA = opt('la', 21)
    pool = [A(192 + 4 * i, 4) for i in range(16)] + [V(32 + 4 * i, 4) for i in range(7)]
    bufs = {}
    free = list(pool)
    for u in range(112 + LA):
        if u - LA - 1 >= 0:
            r = bufs[u - LA - 1]
            if not (r.startswith('v') and u - LA >= 35):
                free.append(r)
            i_, c_ = divmod(u - LA - 1, 7)
            if c_ == 6 and i_ < 4:
                free += [sreg(i_, bb) for bb in range(4)]
        if u < 112:
            bufs[u] = free.pop(0)
    TCH[0] = 26
    g.I('s_mul_i32 s85, %s, %d' % (S(sWave), 16 * 56))
    g.I('s_mul_i32 s84, %s, 7' % S(sJ))
    g.I('s_add_u32 s85, s85, s84')
    g.I('s_lshl_b32 s85, s85, 10')
    g.I('s_add_u32 %s, s85, 0x%x' % (S(sWd), WS_Z2N))
    if ROT2:
        g.I('s_and_b32 %s, %s, 3' % (S(sK2), S(sTbl)))
        g.I('s_lshl_b32 %s, %s, 1' % (S(sK2), S(sK2)))
    else:
        g.I('s_mul_i32 %s, %s, %d' % (S(sK2), S(sTbl), 8 // NT))
    g.I('s_lshl_b32 s83, %s, 2' % S(sTb))
    g.I('s_add_u32 s83, s83, %s' % S(sWave))
    g.I('s_lshl_b32 s84, s83, 5')
    g.I('v_and_b32 v16, 15, v0')
    g.I('v_lshlrev_b32 v16, 1, v16')
    g.I('buffer_load_ushort v12, v16, %s, s84 offen' % sB)
    g.I('v_add_u32 %s, 4096, %s' % (V(vL16b), V(vL16)))
    g.I('s_lshl_b32 s83, %s, 2' % S(sWave))
    g.I('s_add_u32 s0, s0, s83')
    g.I('s_lshl_b32 %s, %s, 14' % (S(sPriv), S(sWave)))
    g.I('s_add_u32 %s, %s, %d' % (S(sPriv), S(sPriv), L3_PRIV))
    g.I('s_mov_b32 %s, %s' % (S(sWm), S(sWd)))
    stamp(g, 'p2go')
    tfirst = Tok('first')

    def bload(u):
        i, c = divmod(u, 7)
        out = []
        if c == 0:
            if i & 1 == 0:
                out += ['s_mul_i32 %s, %s, %d' % (S(sWd), S(sK2), 2 * 56 * 1024), 's_add_u32 %s, %s, %s' % (S(sWd), S(sWd), S(sWm))]
            else:
                out += ['s_add_u32 %s, %s, %d' % (S(sWd), S(sWd), 56 * 1024), 's_add_u32 %s, %s, 1' % (S(sK2), S(sK2)),
                        's_and_b32 %s, %s, 7' % (S(sK2), S(sK2))]
        out.append('buffer_load_dwordx4 %s, %s, %s, %s offen offset:%d sc1' % (bufs[u], V(vL16 if c < 4 else vL16b), sWS, S(sWd), 1024 * (c & 3)))
        return out

    for u in range(LA):
        g.I('\n'.join(bload(u)))
    G = Gaps()
    for u in range(112):
        i, c = divmod(u, 7)
        order = range(4) if i < 15 else (1, 2, 3, 0)
        for bb in order:
            d = V(acc + 16 * c + 4 * bb, 4)
            G.add(mfma(d, bufs[u], sreg(i, bb), d if i else '0'))
        G.load[4 * u - 1] = G.load.get(4 * u - 1, 0) + 4
        for x in stamp_ins('u%d' % u):
            G.before(4 * u, x)
    for u in range(LA, 112):
        G.place(bload(u), 4 * (u - LA), cap=8)
    G.place(['buffer_store_dword %s, off, %s, s0 sc1' % (V(vTag), sWS)], 2)
    vZ = 176
    vZf = 32
    vWd, vWt, vOa, vHa = 18, 22, 60, 190
    pre = ['v_lshrrev_b32 v13, 3, v0', 'v_bfe_u32 v14, v0, 1, 2', 'v_lshrrev_b32 v15, 4, v0', 'v_xor_b32 v14, v14, v15',
           'v_lshlrev_b32 v14, 5, v14', 'v_and_b32 v15, 1, v0', 'v_lshl_or_b32 v14, v15, 4, v14',
           's_lshl_b32 s84, %s, 7' % S(sJ), 'v_lshl_add_u32 v14, v13, 10, v14', 'v_add_u32 %s, s84, v14' % V(vWd)]
    for q in range(1, 4):
        pre.append('v_add_u32 %s, %d, %s' % (V(vWd + q), 7168 * q, V(vWd)))
    pre += ['v_lshrrev_b32 v13, 2, v0', 'v_lshlrev_b32 v14, 7, v13', 'v_and_b32 v15, 3, v0', 'v_lshl_add_u32 v14, v15, 3, v14',
            'v_bfe_u32 v13, v0, 3, 2', 'v_lshl_add_u32 v14, v13, 5, v14', 'v_add_u32 %s, %s, v14' % (V(vWt), S(sPriv))]
    for c in range(1, 4):
        pre.append('v_xor_b32 %s, %d, %s' % (V(vWt + c), c << 5, V(vWt)))
    pre += ['s_lshl_b32 s83, %s, 2' % S(sTb)]
    for bb in range(4):
        pre += ['s_add_u32 s84, %s, %d' % (S(sWave), bb), 's_and_b32 s84, s84, 3', 's_add_u32 %s, s84, s83' % S(sFr + bb),
                's_lshl_b32 s84, %s, 14' % S(sFr + bb), 'v_add_u32 %s, s84, %s' % (V(vOa + bb), V(vL16))]
    pre += ['v_and_b32 v6, 1, v0', 'v_lshlrev_b32 v6, 7, v6', 'v_mov_b32 v17, %s' % S(sGE + 1)]
    G.place([[mk(y) for y in x] if isinstance(x, list) else x for x in pre], 16)
    UZ = opt('uz', 38)
    no = 8 // NJ

    def flat(l):
        return [[mk(y) for y in x] if isinstance(x, list) else mk(x) for x in l]

    fl = ['s_lshr_b32 s83, %s, 1' % S(sTb), 's_lshl_b32 s83, s83, 10', 's_add_u32 s84, s83, 0x%x' % WS_Z1F,
          's_lshl_b32 s85, %s, 8' % S(sWave), 's_add_u32 s83, s83, s85', 's_add_u32 s83, s83, 0x%x' % WS_OF,
          'buffer_load_dwordx4 v[8:11], v5, %s, s84 offen sc1' % sWS, 'buffer_load_dwordx4 v[176:179], v6, %s, s83 offen sc1' % sWS]
    G.place(fl, 4 * UZ, vspace=0)
    it = flat(['s_lshl_b32 s84, %s, 12' % S(sWave), 's_add_u32 %s, s84, 0x%x' % (S(sRho3), WS_O),
               's_mul_i32 s84, %s, %d' % (S(sWave), 7 * 1024), 's_add_u32 %s, s84, 0x%x' % (S(sRho2), WS_H),
               's_add_u32 %s, %s, 4096' % (S(sRbl), S(sRho2)),
               'v_lshrrev_b32 v13, %d, v0' % (no - 1), 'v_and_b32 v14, 3, v13', 'v_lshrrev_b32 v13, 2, v13', 'v_lshlrev_b32 v13, 14, v13',
               'v_lshl_add_u32 v13, v14, 10, v13', 'v_and_b32 v14, %d, v0' % (no - 1), 's_mul_i32 s84, %s, %d' % (S(sJl), no),
               'v_add_u32 v14, s84, v14', 'v_lshl_add_u32 v7, v14, 7, v13', 's_lshl_b32 s84, %s, 16' % S(sTb),
               's_add_u32 s97, s84, %s' % S(sRho3),
               'v_lshrrev_b32 v13, %d, v0' % (no - 1), 'v_mul_u32_u24 v14, 37, v13', 'v_lshrrev_b32 v14, 8, v14',
               'v_mul_u32_u24 v14, 21, v14', 'v_add_u32 v13, v13, v14', 'v_and_b32 v14, %d, v0' % (no - 1),
               's_mul_i32 s84, %s, %d' % (S(sJl), no), 'v_add_u32 v14, s84, v14', 'v_lshlrev_b32 v14, 7, v14',
               's_mul_i32 s84, %s, %d' % (S(sTb), 4 * 28 * 1024), 'v_lshl_add_u32 v13, v13, 10, v14', 'v_add_u32 v27, s84, v13'])
    G.place(it, 4 * 24)
    gi = G.place(poll_items([fl], [8, 9, 10, 11, 176, 177, 178, 179], 13), 4 * (UZ + opt('pl', 16)))
    it = ['s_mul_i32 s83, %s, %d' % (S(sFr), 28 * 1024), 's_add_u32 s83, s83, 0x%x' % WS_Z1R, 's_mul_i32 s84, %s, %d' % (S(sJ), 7 * 512),
          's_and_b32 s85, s84, 512', 's_sub_u32 s84, s84, s85', 's_add_u32 s83, s83, s84', 's_lshr_b32 s85, s85, 6',
          's_add_u32 s82, s83, s85',
          's_lshl_b32 s84, s85, 7', 's_add_u32 s83, s83, s84', 's_xor_b32 s85, s85, 8', 's_add_u32 s83, s83, s85']
    for c in range(7):
        it.append('buffer_load_dwordx2 %s, %s, %s, s%d offen offset:%d sc1' % (V(vZ + 2 * c, 2), V(vL16), sWS, 82 + (c & 1), 1024 * (c >> 1)))
    it = flat(it) + touch(7, sWS, 's97', (1 << (16 * no)) - 1, sc1=True) + ([] if QHELP else w3_touches(16))
    gi = G.place(it, gi + 1, vspace=0, cap=12)
    gl = []
    for c2 in range(14):
        y0, y1, t0, t1 = vZf + 2 * c2, vZf + 2 * c2 + 1, 13 + 2 * (c2 & 1), 14 + 2 * (c2 & 1)
        gl += ['v_lshlrev_b32 %s, 16, %s' % (V(y0), V(vZ + c2)), 'v_and_b32 %s, 0xffff0000, %s' % (V(y1), V(vZ + c2))]
        for tmpl in ('v_mul_f32 {t}, {y}, {y}', 'v_fma_f32 {t}, {t}, %s, v17' % S(sGE), 'v_mul_f32 {t}, {t}, {y}', 'v_exp_f32 {t}, {t}',
                     'v_add_f32 {t}, 1.0, {t}', 'v_rcp_f32 {t}, {t}', 'v_mul_f32 {y}, {y}, {t}'):
            for y, t in ((y0, t0), (y1, t1)):
                gl.append(tmpl.format(t=V(t), y=V(y)))
    gi = G.place(gl, gi + opt('zlat', 60), cap=opt('gcap', 8))
    print('gelu ends at gap', gi, 'of', len(G.m), file=sys.stderr)

    wd, wr = {}, {}

    def wreg(k):
        return 64 + 16 * k if k < 4 else (16 * (k - 4) if k < 8 else 128 + 16 * (k - 8))

    obuf = [V(192 + 4 * i, 4) for i in range(16)]

    def oload(k):
        out = []
        for bb in range(4):
            out.append(mk('buffer_load_dwordx4 %s, %s, %s, %s offen offset:%d sc1' % (obuf[4 * k + bb], V(vOa + bb), sWS, S(sRho3), 1024 * k)))
        return out

    def w3_issue(k):
        out = []
        if k - 4 in wr:
            out.append(mkwait(wr[k - 4]))
        t = wd[k] = Tok('w3_%d' % k)
        if k < 4:
            out += flat(['s_lshl_b32 s83, %s, 17' % S(sWave), 's_add_u32 s83, s83, %d' % (k << 15)])
        else:
            out += flat(['s_mul_i32 s83, %s, %d' % (S(sWave), 7 << 15), 's_add_u32 s83, s83, %d' % ((k - 4) << 15)])
        out += [mk('s_add_u32 m0, %s, %d' % (S(sPriv), (k & 3) * 4096))]
        for q in range(4):
            out.append(mk('buffer_load_dwordx4 %s, %s, s83 offen offset:%d lds' % (V(vWd + q), sWO if k < 4 else sWOUT, 1024 * q), tok=t))
        return out

    def w3_read(k):
        out = [mkwait(wd[k])]
        t = wr[k] = Tok('w3r_%d' % k)
        for c in range(4):
            for h in range(2):
                out.append(mk('ds_read_b64_tr_b16 %s, %s offset:%d' % (A(wreg(k) + 4 * c + 2 * h, 2), V(vWt + c), (k & 3) * 4096 + 2048 * h), tok=t))
        return out

    tail = []
    for k in range(4):
        tail += w3_issue(k)
    tail += w3_read(0) + w3_issue(4)
    G.place(tail, 4 * (112 - LA) + 1, vspace=opt('vst', 4), cap=12)
    bgA = oload(0) + w3_read(1) + w3_issue(5)
    bgB = oload(1) + w3_read(2) + w3_issue(6) + oload(2) + w3_read(3) + w3_issue(7) + oload(3)
    tr = Tok('red')
    it = []
    for bb in range(1, 4):
        it += ['s_add_u32 s84, %s, %d' % (S(sWave), bb), 's_and_b32 s84, s84, 3', 's_mul_i32 s84, s84, 21504',
               's_add_u32 s84, s84, %d' % ((bb - 1) * 7168), 'v_add_u32 %s, s84, %s' % (V(28 + bb), V(vL16))]
    it += ['s_mul_i32 s84, %s, 21504' % S(sWave), 'v_add_u32 v190, s84, %s' % V(vL16), 'v_lshlrev_b32 v12, 16, v12']
    G.place(it, 4 * 32)
    wl = []
    for c in range(7):
        for bb in range(1, 4):
            w = mk('ds_write_b128 %s, %s offset:%d' % (V(28 + bb), V(acc + 16 * c + 4 * bb, 4), 1024 * c), tok=tr)
            gp = 4 * (105 + c) + 4 + bb
            if gp < len(G.m):
                G.put(gp, w)
            else:
                wl.append(w)
    G.emit(g)
    stamp(g, 'p2e')
    m, left = spread(wl, bgA, vgap=0)
    g.extend(m + left)
    g.wait(tr)
    g.I('s_barrier')
    stamp(g, 'red')
    for c in range(7):
        for bb in range(1, 4):
            g.I('ds_read_b128 %s, v190 offset:%d' % (V(acc + 16 * c + 4 * bb, 4), (bb - 1) * 7168 + 1024 * c))
    th = Tok('h')
    vH = 176
    main = []
    for c in range(7):
        a = acc + 16 * c
        for k in range(2):
            main.append('v_pk_add_f32 %s, %s, %s op_sel_hi:[1,0]' % (V(a + 2 * k, 2), V(a + 2 * k, 2), V(12, 2)))
    main += ['s_mul_i32 s84, %s, 28' % S(sFr), 's_mul_i32 s85, %s, 7' % S(sJ), 's_lshr_b32 s85, s85, 1', 's_add_u32 s84, s84, s85',
             's_lshl_b32 s84, s84, 10', 's_add_u32 s84, s84, 0x%x' % WS_H]
    for c in range(7):
        a = acc + 16 * c
        for k in range(2):
            main.append('v_pk_add_f32 %s, %s, %s' % (V(a + 2 * k, 2), V(a + 2 * k, 2), V(a + 4 + 2 * k, 2)))
            main.append('v_pk_add_f32 %s, %s, %s' % (V(a + 8 + 2 * k, 2), V(a + 8 + 2 * k, 2), V(a + 12 + 2 * k, 2)))
        for k in range(2):
            main.append('v_pk_add_f32 %s, %s, %s' % (V(a + 2 * k, 2), V(a + 2 * k, 2), V(a + 8 + 2 * k, 2)))
        for k in range(2):
            main.append('v_pk_mul_f32 %s, %s, %s' % (V(a + 2 * k, 2), V(a + 2 * k, 2), V(vZf + 4 * c + 2 * k, 2)))
        for k in range(2):
            main.append('v_cvt_pk_bf16_f32 %s, %s, %s' % (V(vH + 2 * c + k), V(a + 2 * k), V(a + 2 * k + 1)))
    m, bgB = spread([mk(x) for x in main], bgB, vgap=opt('vge', 60))
    g.extend(m)
    lo, le = lab('L_hodd'), lab('L_hend')
    g.I('s_bitcmp1_b32 %s, 0' % S(sJ))
    g.I('s_nop 1')
    g.I('s_cbranch_scc1 %s' % lo)
    for k in range(3):
        g.I('buffer_store_dwordx4 %s, %s, %s, s84 offen offset:%d sc1' % (V(vH + 4 * k, 4), V(vL16), sWS, 1024 * k), tok=th)
    g.I('buffer_store_dwordx2 %s, %s, %s, s84 offen offset:3072 sc1' % (V(vH + 12, 2), V(vL16), sWS), tok=th)
    g.I('s_branch %s' % le)
    g.label(lo)
    g.I('buffer_store_dwordx2 %s, %s, %s, s84 offen offset:8 sc1' % (V(vH, 2), V(vL16), sWS), shadow=True)
    for k in range(3):
        g.I('buffer_store_dwordx4 %s, %s, %s, s84 offen offset:%d sc1' % (V(vH + 2 + 4 * k, 4), V(vL16), sWS, 1024 * (k + 1)), shadow=True)
    g.label(le)
    stamp(g, 'hst')
    g.I('s_barrier')
    acc3 = 64
    hbuf = [V(128 + 4 * i, 4) for i in range(12)] + [A(176 + 4 * i, 4) for i in range(16)]
    xa = ['v_and_b32 v13, 15, v0', 'v_lshlrev_b32 v13, 10, v13', 'v_bfe_u32 v14, v0, 4, 1', 'v_lshl_add_u32 v13, v14, 5, v13',
          'v_bfe_u32 v14, v0, 5, 1', 'v_lshl_add_u32 v13, v14, 4, v13', 's_lshl_b32 %s, %s, 14' % (S(sWm), S(sFr)),
          's_lshl_b32 s84, %s, 7' % S(sJ), 's_add_u32 %s, %s, s84' % (S(sWm), S(sWm))]
    for bb in range(4):
        xa += ['s_mul_i32 s84, %s, %d' % (S(sFr + bb), 28 * 1024), 'v_add_u32 %s, s84, %s' % (V(14 + bb), V(vL16))]
    m, bgB = spread([mk(x) for x in xa], bgB, vgap=30)
    g.extend(m + bgB)
    g.extend(w3_read(4) + w3_issue(8) + w3_read(5) + w3_issue(9))
    g.extend(flag_items([th], WS_HF, sTb, sJ))
    stamp(g, 'hfl')
    G = Gaps()
    for k in range(4):
        for bb in range(4):
            for c in range(4):
                d = V(acc3 + 16 * c + 4 * bb, 4)
                G.add(mfma(d, A(wreg(k) + 4 * c, 4), obuf[4 * k + bb], d if k else '0'))
    gi = G.place(w3_read(6) + w3_issue(10) + flat(['buffer_load_dwordx4 v[32:35], v13, %s, %s offen' % (sX, S(sWm)),
                                                   'buffer_load_dwordx4 v[36:39], v13, %s, %s offen offset:64' % (sX, S(sWm))]),
                 0, vspace=2, cap=12)
    gi = G.place(w3_read(7) + w3_read(8) + w3_read(9), gi, cap=12)
    G.emit(g)
    stamp(g, 'ome')
    hld = ['s_lshl_b32 s83, %s, 2' % S(sTb), 's_add_u32 s83, s83, %s' % S(sWave), 's_lshl_b32 s83, s83, 8',
           's_add_u32 s83, s83, 0x%x' % WS_HF, 'buffer_load_dwordx4 v[8:11], v6, %s, s83 offen sc1' % sWS]
    g.I('\n'.join(hld))
    g.extend(w3_read(10))
    g.extend(poll_items([hld], [8, 9, 10, 11], 12))
    stamp(g, 'hgo')

    def hload(k):
        out = []
        for bb in range(4):
            out.append(mk('buffer_load_dwordx4 %s, %s, %s, %s offen offset:%d sc1' % (hbuf[4 * (k - 4) + bb], V(14 + bb), sWS, S(sRho2 if k < 8 else sRbl), 1024 * (k & 3))))
        return out

    G = Gaps()
    for k in range(4, 11):
        for bb in (range(4) if k < 10 else (1, 2, 3, 0)):
            for c in range(4):
                d = V(acc3 + 16 * c + 4 * bb, 4)
                G.add(mfma(d, A(wreg(k) + 4 * c, 4), hbuf[4 * (k - 4) + bb], d))
    g.extend(touch(27, sWS, S(sRho2), (1 << (28 * no)) - 1, sc1=True))
    HL = opt('hl', 3)
    for k in range(4, 4 + HL):
        g.extend(hload(k))
    gi = 0
    for k in range(4 + HL, 11):
        gi = G.place(hload(k), max(gi, 16 * (k - 4 - HL)), vspace=3, cap=12)
    tr3 = Tok('red3')
    it = []
    for bb in range(1, 4):
        it += ['s_add_u32 s84, %s, %d' % (S(sWave), bb), 's_and_b32 s84, s84, 3', 's_mul_i32 s84, s84, 12288',
               's_add_u32 s84, s84, %d' % ((bb - 1) * 4096), 'v_add_u32 %s, s84, %s' % (V(28 + bb), V(vL16))]
    it += ['s_mul_i32 s84, %s, 12288' % S(sWave), 'v_add_u32 v7, s84, %s' % V(vL16)]
    G.place(it, gi + 1)
    wl = []
    for j, bb in enumerate((1, 2, 3)):
        for c in range(4):
            w = mk('ds_write_b128 %s, %s offset:%d' % (V(28 + bb), V(acc3 + 16 * c + 4 * bb, 4), 1024 * c), tok=tr3)
            gp = 96 + 4 * j + c + 4
            if gp < len(G.m):
                G.put(gp, w)
            else:
                wl.append(w)
    G.emit(g)
    stamp(g, 'p3e')
    g.extend(wl)
    for k in range(8):
        g.I('v_lshlrev_b32 %s, 16, %s' % (V(40 + 2 * k), V(32 + k)))
        g.I('v_and_b32 %s, 0xffff0000, %s' % (V(41 + 2 * k), V(32 + k)))
    g.wait(tr3)
    g.I('s_barrier')
    for c in range(4):
        for bb in range(1, 4):
            g.I('ds_read_b128 %s, v7 offset:%d' % (V(acc3 + 16 * c + 4 * bb, 4), (bb - 1) * 4096 + 1024 * c))
    for pr in range(2):
        for c in (2 * pr, 2 * pr + 1):
            a = acc3 + 16 * c
            for k in range(2):
                g.I('v_pk_add_f32 %s, %s, %s' % (V(a + 2 * k, 2), V(a + 2 * k, 2), V(a + 4 + 2 * k, 2)))
                g.I('v_pk_add_f32 %s, %s, %s' % (V(a + 8 + 2 * k, 2), V(a + 8 + 2 * k, 2), V(a + 12 + 2 * k, 2)))
        for c in (2 * pr, 2 * pr + 1):
            a = acc3 + 16 * c
            for k in range(2):
                g.I('v_pk_add_f32 %s, %s, %s' % (V(a + 2 * k, 2), V(a + 2 * k, 2), V(a + 8 + 2 * k, 2)))
        a0, a1 = acc3 + 32 * pr, acc3 + 32 * pr + 16
        for r in range(4):
            g.I('v_permlane16_swap_b32 %s, %s' % (V(a0 + r), V(a1 + r)))
        for k in range(4):
            src = (a0 if k < 2 else a1) + 2 * (k & 1)
            g.I('v_pk_add_f32 %s, %s, %s' % (V(src, 2), V(src, 2), V(40 + 8 * pr + 2 * k, 2)))
        for k in range(4):
            src = (a0 if k < 2 else a1) + 2 * (k & 1)
            g.I('v_cvt_pk_bf16_f32 %s, %s, %s' % (V(32 + 4 * pr + k), V(src), V(src + 1)))
        g.I('buffer_store_dwordx4 %s, v13, %s, %s offen offset:%d' % (V(32 + 4 * pr, 4), sOUT, S(sWm), 64 * pr))
    if STAMP:
        g.raw('s_memtime s[98:99]')
        g.raw('s_memrealtime s[100:101]')
        g.I('s_waitcnt lgkmcnt(0)')
        g.I('s_lshl_b32 s82, s2, 2')
        g.I('s_add_u32 s82, s82, %s' % S(sWave))
        g.I('s_lshl_b32 s82, s82, 6')
        g.I('s_add_u32 s82, s82, 0x%x' % WS_DBG)
        for i in range(8):
            g.I('v_mov_b32 %s, %s' % (V(64 + i), S(sSt + 2 * i)))
        g.I('v_mov_b32 v72, s98\nv_mov_b32 v73, s98\nv_mov_b32 v74, s100\nv_mov_b32 v75, s1')
        for i in range(76, 80):
            g.I('v_mov_b32 v%d, 0' % i)
        g.I('s_mov_b64 exec, 1')
        for i in range(4):
            g.I('buffer_store_dwordx4 %s, off, %s, s82 offset:%d' % (V(64 + 4 * i, 4), sWS, 16 * i))
    if opt('dbgspan', 0):
        g.raw('s_memrealtime s[100:101]')
        g.I('s_waitcnt lgkmcnt(0)')
        g.I('s_not_b32 s1, s1')
        g.I('v_mov_b32 v64, s100\nv_mov_b32 v65, s1')
        g.I('s_mov_b64 exec, 1')
        g.I('buffer_atomic_umax v64, off, %s, 0 offset:4' % sDBG)
        g.I('buffer_atomic_umax v65, off, %s, 0 offset:8' % sDBG)
    g.label('L_end')
    g.I('s_endpgm')
    return g


def main():
    out = []
    hdr = open('parallel_sum__sliding_local_dilated__mixer_gmlp__prompt.s.ref').read().split('\n')
    for l in hdr:
        if l.startswith('; @launch'):
            break
        out.append(l)
    out.append('; @launch grid=(256,1,1) block=(256,1,1) lds=%d' % LDS_BYTES)
    out.append('.amdgcn_target "amdgcn-amd-amdhsa--gfx950"\n.text\n.globl %s\n.p2align 8\n.type %s,@function\n%s:' % (KN, KN, KN))
    stats = {}
    lines, st0 = finish(prologue(), None, stats)
    out += lines
    lines, st1 = finish(p1z_head(), st0, stats)
    out += lines
    for n1, l in ((8, None), (6, 'L_p1z6')):
        if l:
            out.append(l + ':')
        lines, st = finish(p1z(n1), st1, stats)
        assert not [o for o in st.vm if o.kind != 'vst'], 'loads pending at join'
        out += lines
    out.append('L_p1q:')
    lines, st = finish(p1q(), st0, stats)
    assert not [o for o in st.vm if o.kind != 'vst' and o.wr]
    out += lines
    lines, st = finish(p23(), None, stats)
    out += lines
    out += tail_code
    out.append('L_codeend:')
    out.append('s_endpgm')
    out.append(""".section .rodata,"a"
.p2align 6
.amdhsa_kernel %s
  .amdhsa_next_free_vgpr 512
  .amdhsa_next_free_sgpr 102
  .amdhsa_accum_offset 256
  .amdhsa_group_segment_fixed_size 0
  .amdhsa_kernarg_size 88
  .amdhsa_user_sgpr_count 2
  .amdhsa_user_sgpr_kernarg_segment_ptr 1
  .amdhsa_system_sgpr_workgroup_id_x 1
.end_amdhsa_kernel""" % KN)
    fn = [a for a in sys.argv[1:] if not a.startswith('--')][0]
    open(fn, 'w').write('\n'.join(out) + '\n')
    print('stats', stats, 'lines', len(out), file=sys.stderr)


main()
```
